```python
import torch

def _softmax(x, axis=-1):
    return torch.softmax(x, dim=axis)
def _gelu(x):
    return torch.nn.functional.gelu(x, approximate="tanh")
def _silu(x):
    return torch.nn.functional.silu(x)
def _sigmoid(x):
    return torch.sigmoid(x)
def _layernorm(x, axis=-1, eps=1e-5):
    m = x.mean(dim=axis, keepdim=True)
    v = x.var(dim=axis, keepdim=True, unbiased=False)
    return (x - m) / torch.sqrt(v + eps)
def _scatter_add(tgt, idx, src, axis=0):
    return tgt.clone().index_add_(axis, idx, src)
def _segment_sum(src, seg, n):
    out = torch.zeros((n,) + src.shape[1:], dtype=src.dtype)
    return out.index_add_(0, seg, src)
def _pad(x, pw):
    flat = tuple(v for pair in reversed(pw) for v in pair)
    return torch.nn.functional.pad(x, flat)

kernel_name = 'interleave_layers__mha_block__dense_activation_silu__prompt'

def setup_inputs():

    _w = (lambda a: (lambda t: t.to(torch.bfloat16) if t.is_floating_point() else t)(torch.as_tensor(a)))
    def _A_setup():
        B, S, D, H = 1, 2048, 576, 32
        return {
            "x": _w((lambda *s: torch.randn(*s, dtype=torch.bfloat16) * 0.05)(B, S, D)),
            "wqkv": _w((lambda *s: torch.randn(*s, dtype=torch.bfloat16) * 0.05)(D, 3 * D)),
            "wo": _w((lambda *s: torch.randn(*s, dtype=torch.bfloat16) * 0.05)(D, D)),
        }
    _A_in = _A_setup()

    def _B_setup():
        B, S, D, F = 1, 2048, 576, 4608
        return {
            "x": _w((lambda *s: torch.randn(*s, dtype=torch.bfloat16) * 0.05)(B, S, D)),
            "w1": _w((lambda *s: torch.randn(*s, dtype=torch.bfloat16) * 3.2)(D, F) * (D ** -0.5)),
            "w2": _w((lambda *s: torch.randn(*s, dtype=torch.bfloat16) * 0.4)(F, D) * (F ** -0.5)),
        }
    _B_in = _B_setup()

    return {
        "A_x": _A_in["x"],
        "A_wqkv": _A_in["wqkv"],
        "A_wo": _A_in["wo"],
        "B_x": _B_in["x"],
        "B_w1": _B_in["w1"],
        "B_w2": _B_in["w2"],
    }

def reference(A_x, A_wqkv, A_wo, B_x, B_w1, B_w2):
    def _A_ref(x, wqkv, wo):
        B, S, D = x.shape
        H = 32
        Dh = D // H
        qkv = (lambda x, *d: x.permute(*d))((x @ wqkv).reshape(B, S, 3, H, Dh), 2, 0, 3, 1, 4)
        q, k, v = qkv[0], qkv[1], qkv[2]
        scores = torch.einsum("bhqd,bhkd->bhqk", q, k) * (Dh ** -0.5)
        p = _softmax(scores, axis=-1)
        o = torch.einsum("bhqk,bhkd->bhqd", p, v)
        return (lambda x, *d: x.permute(*d))(o, 0, 2, 1, 3).reshape(B, S, D) @ wo

    def _B_ref(x, w1, w2):
        h = torch.einsum("bsd,df->bsf", x, w1)
        h = _silu(h)
        out = torch.einsum("bsf,fd->bsd", h, w2)
        return out

    x = A_x
    x = x + _A_ref(_layernorm(x, axis=-1), A_wqkv, A_wo)
    x = x + _B_ref(_layernorm(x, axis=-1), B_w1, B_w2)
    x = x + _A_ref(_layernorm(x, axis=-1), A_wqkv, A_wo)
    x = x + _B_ref(_layernorm(x, axis=-1), B_w1, B_w2)
    return x
```

```python
import re

class Kern:
    def __init__(self, name, nvgpr=256, nagpr=0, nsgpr=100):
        self.name=name; self.l=[]; self.vm=[]; self.lg=[]
        self.nvgpr=nvgpr; self.nagpr=nagpr; self.nsgpr=nsgpr
        self.tail=[]
        self._lab=0
    def e(self, s):
        if isinstance(s,(list,tuple)):
            for x in s: self.e(x)
        else:
            self.l.append(s)
    def c(self, s): self.l.append("; "+s)
    def label(self, s): self.l.append(s+":")
    def newlabel(self, base):
        self._lab+=1; return f"{self.name}_{base}_{self._lab}"
    STAMPS=False
    def stamp(self,i):
        if Kern.STAMPS:
            if i==0: self.e("s_memrealtime s[90:91]")
            self.e(f"s_memtime s[{64+2*i}:{65+2*i}]"); self.nstamp=max(getattr(self,'nstamp',0),i+1)
    def stamp_dump(self, wg=0):
        if not Kern.STAMPS: return
        self.nsgpr=100
        L=self.newlabel("nodump")
        self.e(["s_memrealtime s[92:93]","s_waitcnt lgkmcnt(0)",f"s_cmp_lg_u32 s2, {wg}",f"s_cbranch_scc1 {L}",
                "s_load_dwordx2 s[6:7], s[0:1], 56","s_waitcnt lgkmcnt(0)","s_mul_i32 s60, s3, 48","v_mov_b32 v2, s60"])
        for i in range(self.nstamp):
            self.e([f"s_sub_u32 s60, s{64+2*i}, s64",f"v_mov_b32 v3, s60",f"global_store_dword v2, v3, s[6:7] offset:{4*i}"])
        self.e(["s_sub_u32 s60, s92, s90","v_mov_b32 v3, s60","global_store_dword v2, v3, s[6:7] offset:44"])
        self.label(L)
    def vm_op(self, s, tag=None):
        self.e(s); self.vm.append(tag)
    def vm_need(self, tag):
        idx=[i for i,t in enumerate(self.vm) if t==tag]
        if not idx: return None
        return len(self.vm)-1-idx[-1]
    def vm_wait(self, tag):
        n=self.vm_need(tag)
        if n is None: return False
        assert n<=63, ("vmcnt too large", n, tag)
        self.e(f"s_waitcnt vmcnt({n})")
        self.vm=self.vm[len(self.vm)-n:] if n>0 else []
        return True
    def vm_wait_all(self):
        self.e("s_waitcnt vmcnt(0)"); self.vm=[]
    def lg_op(self, s, tag=None):
        self.e(s); self.lg.append(tag)
    def lg_need(self, tag):
        idx=[i for i,t in enumerate(self.lg) if t==tag]
        if not idx: return None
        return len(self.lg)-1-idx[-1]
    def lg_wait(self, tag):
        n=self.lg_need(tag)
        if n is None: return False
        if n>15: n=15
        self.e(f"s_waitcnt lgkmcnt({n})")
        self.lg=self.lg[len(self.lg)-n:] if n>0 else []
        return True
    def lg_wait_all(self):
        self.e("s_waitcnt lgkmcnt(0)"); self.lg=[]
    def text(self):
        o=[f".globl {self.name}",".p2align 8",f".type {self.name},@function",f"{self.name}:"]
        for x in self.l:
            if x.endswith(":") or x.startswith(";") or x.startswith("."): o.append(x)
            else: o.append("  "+x)
        o+=self.tail
        return "\n".join(o)
    def desc(self):
        tot=self.nvgpr+self.nagpr
        acc=(self.nvgpr+3)//4*4
        if self.nagpr: tot=acc+self.nagpr
        return "\n".join([".p2align 6",f".amdhsa_kernel {self.name}",
            f"  .amdhsa_next_free_vgpr {tot}",f"  .amdhsa_next_free_sgpr {self.nsgpr}",f"  .amdhsa_accum_offset {acc}",
            "  .amdhsa_group_segment_fixed_size 0","  .amdhsa_kernarg_size 72","  .amdhsa_user_sgpr_count 2",
            "  .amdhsa_user_sgpr_kernarg_segment_ptr 1","  .amdhsa_system_sgpr_workgroup_id_x 1",
            "  .amdhsa_float_denorm_mode_32 3",".end_amdhsa_kernel"])

_reg_re=re.compile(r'^(-?)(\|?)(abs\()?([vas])(\d+|\[(\d+):(\d+)\])')
def regs_of(op):
    op=op.strip()
    if op in("vcc","exec","m0","scc"): return [("s",op)]
    if op in ("vcc_lo","vcc_hi"): return [("s","vcc")]
    m=_reg_re.match(op)
    if not m: return []
    k=m.group(4)
    if m.group(6) is not None:
        return [(k,i) for i in range(int(m.group(6)),int(m.group(7))+1)]
    return [(k,int(m.group(5)))]
TRANS=("v_exp_","v_log_","v_rcp_","v_rsq_","v_sqrt_","v_sin_","v_cos_")
def split_ops(rest):
    ops=[];d=0;cur=""
    for ch in rest:
        if ch=="[":d+=1
        if ch=="]":d-=1
        if ch=="," and d==0: ops.append(cur.strip());cur=""
        else: cur+=ch
    if cur.strip(): ops.append(cur.strip())
    out=[]
    for o in ops:
        out.append(o.split()[0] if o.split() else o)
    return out
def parse(line):
    line=line.split(";")[0].strip()
    if not line or line.endswith(":") or line.startswith("."): return None
    p=line.split(None,1); mn=p[0]; ops=split_ops(p[1]) if len(p)>1 else []
    d=dict(mn=mn,w=[],r=[],kind="other",line=line,states=1)
    R=lambda i: regs_of(ops[i]) if i<len(ops) else []
    if mn=="s_nop": d["states"]=int(ops[0],0)+1; d["kind"]="nop"; return d
    if mn.startswith("v_mfma"):
        d["kind"]="mfma"; d["w"]=R(0); d["A"]=R(1); d["B"]=R(2); d["C"]=R(3); d["r"]=d["A"]+d["B"]+d["C"]
        d["passes"]= 16 if ("_2b_" in mn or "32x32x2_f32" in mn) else (8 if "32x32" in mn else 4)
        return d
    if mn.startswith("v_"):
        d["kind"]="trans" if mn.startswith(TRANS) else "valu"
        if mn.startswith("v_cmp"):
            d["w"]=R(0); d["r"]=sum((R(i) for i in range(1,len(ops))),[])
            if mn.startswith("v_cmpx"): d["w"]=d["w"]+[("s","exec")]
        elif mn.startswith("v_readfirstlane") or mn.startswith("v_readlane"):
            d["w"]=R(0); d["r"]=sum((R(i) for i in range(1,len(ops))),[]); d["lane"]=True
        elif mn.startswith("v_permlane"):
            d["w"]=R(0)+R(1); d["r"]=R(0)+R(1); d["perm"]=True
        else:
            d["w"]=R(0); d["r"]=sum((R(i) for i in range(1,len(ops))),[])
            if mn.startswith(("v_fmac","v_dot2c","v_mac","v_pk_fmac")): d["r"]+=R(0)
            if "_co_" in mn and len(ops)>1 and ops[1] in("vcc",) : d["w"]+= [("s","vcc")]
            if mn.startswith("v_cndmask") and len(ops)==3: d["r"]+=[("s","vcc")]
            if "dpp" in mn or "row_" in line or "quad_perm" in line: d["dpp"]=True
            if "sdwa" in mn and "UNUSED_PRESERVE" in line: d["r"]+=R(0)
        return d
    if mn.startswith(("buffer_","global_")):
        d["kind"]="vmem"
        lds=" lds" in (" "+line) and mn.startswith("buffer_load") or "load_lds" in mn
        if mn.startswith("buffer_load") and not lds:
            d["w"]=R(0); d["r"]=sum((R(i) for i in range(1,len(ops))),[])
        elif mn.startswith("global_load") and not lds:
            d["w"]=R(0); d["r"]=sum((R(i) for i in range(1,len(ops))),[])
        else:
            d["r"]=sum((R(i) for i in range(0,len(ops))),[])
            if lds: d["r"]+=[("s","m0")]; d["dma"]=True
            if mn.startswith("buffer_store"): d["sdata"]=R(0); d["wide"]=("x4" in mn or "x3" in mn)
            if mn.startswith("global_store"): d["sdata"]=R(1); d["wide"]=("x4" in mn or "x3" in mn)
        return d
    if mn.startswith("ds_"):
        d["kind"]="ds"
        if mn.startswith(("ds_read","ds_bpermute","ds_permute","ds_swizzle")):
            d["w"]=R(0); d["r"]=sum((R(i) for i in range(1,len(ops))),[])
        else:
            d["r"]=sum((R(i) for i in range(0,len(ops))),[])
        return d
    if mn.startswith("s_"):
        d["kind"]="salu"
        if mn.startswith(("s_cmp","s_cbranch","s_branch","s_waitcnt","s_barrier","s_endpgm","s_setprio","s_bitcmp")):
            d["r"]=sum((R(i) for i in range(0,len(ops))),[])
        else:
            d["w"]=R(0); d["r"]=sum((R(i) for i in range(1,len(ops))),[])
            if "saveexec" in mn: d["w"]+=[("s","exec")]
        return d
    return d
def check_hazards(lines, name=""):
    ins=[p for p in (parse(l) for l in lines) if p]
    probs=[]
    pos=[];t=0
    for x in ins: pos.append(t); t+=x["states"]
    lastw={}
    lastCread={}
    laststore={}
    def dist(i,j):
        return pos[j]-pos[i]-ins[i]["states"]
    for j,x in enumerate(ins):
        k=x["kind"]
        isvalu=k in("valu","trans")
        for r in x["r"]:
            if r not in lastw: continue
            i=lastw[r]; p=ins[i]; d=dist(i,j); need=0
            pk=p["kind"]
            if pk in("valu","trans"):
                if k=="mfma" and r[0] in "va": need=2
                if pk=="trans" and k in("valu",) and r[0]=="v": need=max(need,1)
                if pk=="trans" and k=="mfma": need=2
                if x.get("lane") and r[0]=="v": need=max(need,1)
                if x.get("perm") and r[0]=="v": need=max(need,2)
                if x.get("dpp") and r[0]=="v": need=max(need,2)
                if r[0]=="s" and r[1]!="exec":
                    if isvalu: need=max(need,2)
                    if k=="vmem": need=max(need,5)
                    if x.get("lane"): need=max(need,4)
                if r==("s","exec") and x.get("dpp"): need=max(need,5)
            if p["mn"].startswith("v_dot") and x["mn"]!=p["mn"] and r[0]=="v": need=max(need,3)
            if pk=="mfma":
                P=p["passes"]; big={4:8,8:12,16:20,2:5}[P]
                if k=="mfma":
                    if r in x["C"] and r not in x["A"] and r not in x["B"]:
                        same=(x["C"]==p["w"] and x["passes"]==P)
                        need=0 if same else {4:6,8:10,16:18}[P]
                    else: need=big
                elif k in("valu","trans","vmem","ds"): need=big
            if pk=="salu" and r==("s","m0") and x.get("dma"): need=1
            if d<need: probs.append(f"{name}: RAW {r} need {need} have {d}: [{p['line']}] -> [{x['line']}]")
        for r in x["w"]:
            if r in lastw:
                i=lastw[r]; p=ins[i]; d=dist(i,j)
                if p["kind"]=="mfma":
                    P=p["passes"]; big={4:8,8:12,16:20}[P]
                    if k in("valu","trans","vmem","ds") and d<big:
                        probs.append(f"{name}: WAW {r} need {big} have {d}: [{p['line']}] -> [{x['line']}]")
                    if k=="mfma" and not (r in x["C"]) and d<{4:6,8:10,16:18}[P]:
                        probs.append(f"{name}: WAW(mfma) {r} have {d}: [{p['line']}] -> [{x['line']}]")
            if r in lastCread and isvalu:
                i=lastCread[r]; P=ins[i]["passes"]; need={4:3,8:7,16:15}[P]; d=dist(i,j)
                if d<need: probs.append(f"{name}: WAR-C {r} need {need} have {d}: [{ins[i]['line']}] -> [{x['line']}]")
            if r in laststore and isvalu:
                i=laststore[r]; d=dist(i,j)
                if d<2: probs.append(f"{name}: store-data WAR {r} have {d}: [{ins[i]['line']}] -> [{x['line']}]")
        if k=="mfma":
            for r in x["C"]: lastCread[r]=j
        if x.get("wide"):
            for r in x["sdata"]: laststore[r]=j
        for r in x["w"]: lastw[r]=j
    return probs

def build_file(kerns, launches, header_comment):
    o=[]
    o+=header_comment
    for (k,grid,block,lds) in launches:
        o.append(f"; @launch kernel={k} grid=({grid},1,1) block=({block},1,1) lds={lds}")
    o.append('.amdgcn_target "amdgcn-amd-amdhsa--gfx950"')
    o.append(".text")
    for k in kerns: o.append(k.text())
    o.append('.section .rodata,"a"')
    for k in kerns: o.append(k.desc())
    return "\n".join(o)+"\n"
```

```python
from asmlib import *
TRANSP=("v_exp_","v_log_","v_rcp_","v_rsq_","v_sqrt_")
def cost(item):
    if isinstance(item,str):
        if item.startswith(TRANSP): return 8
        if item.startswith(";"): return 0
        if item.startswith("s_nop"): return 4*(int(item.split()[1])+1)
        return 4
    if item[0] in("vm","lg"): return 4
    if item[0] in("vmwait","lgwait"): return 4
    if item[0]=="call": return 0
    return 4
class Stream:
    def __init__(self,k,ring,R,total,srd="s[8:11]",voff="v1",soff="s20",btail=None,nt=""):
        self.k=k; self.ring=ring; self.R=R; self.total=total; self.srd=srd; self.voff=voff; self.soff=soff
        self.n=0
        self.issued=0
        self.btail=btail
        self.mod=nt
    def breg(self,u,kap):
        b=kap*2+u
        if b<64: return f"a[{4*b}:{4*b+3}]"
        r=self.btail+4*(b-64); return f"v[{r}:{r+3}]"
    def slot(self,n):
        r=self.ring+4*(n%self.R); return f"v[{r}:{r+3}]"
    def issue(self):
        n=self.issued
        if n>=self.total: return
        k=self.k
        if n%4==0 and n>0: k.e(f"s_add_u32 {self.soff}, {self.soff}, 4096")
        off=(n%4)*1024
        k.vm_op(f"buffer_load_dwordx4 {self.slot(n)}, {self.voff}, {self.srd}, {self.soff} offen offset:{off}{self.mod}", ("A",n))
        self.issued+=1
    def prefetch(self,cnt=None):
        for _ in range(self.R if cnt is None else cnt): self.issue()
    def place(self,item):
        k=self.k
        if isinstance(item,str): k.e(item)
        elif item[0]=="vm": k.vm_op(item[1],item[2])
        elif item[0]=="lg": k.lg_op(item[1],item[2])
        elif item[0]=="vmwait": k.vm_wait(item[1])
        elif item[0]=="lgwait":
            if item[1] is None: k.lg_wait_all()
            else: k.lg_wait(item[1])
        elif item[0]=="call": item[1]()
        else: raise ValueError(item)
    def tile(self,acc,kaps,fillers=(),swap=False,cinit=(False,False),bjit=None,la=3,fill_start=4,budget=24,
             at=None,bpre=0,flush_at=None,us=(0,1)):
        k=self.k; fill=list(fillers); at=at or {}
        nsteps=len(kaps); gap=0
        def jit(s):
            if bjit is None or s>=nsteps: return
            for u in us:
                ins=bjit(u,kaps[s])
                if ins: k.lg_op(ins,("B",u,kaps[s]))
        if bjit is not None:
            for s in range(bpre,min(la,nsteps)): jit(s)
        def dofill(b):
            while fill and b>0:
                c=cost(fill[0])
                if c>b+2 and b<budget-6: break
                self.place(fill.pop(0)); b-=c
        for s,kap in enumerate(kaps):
            n=self.n
            if s in at:
                for it in at[s]: self.place(it)
            if k.vm_need(("A",n)) is not None:
                tgt=("A",n+1) if (n+1<self.issued and s+1<nsteps and k.vm_need(("A",n+1)) is not None and k.vm_need(("A",n+1))>=self.R-3) else ("A",n)
                k.vm_wait(tgt)
            if bjit is not None:
                for u in reversed(us):
                    if k.lg_need(("B",u,kap)) is not None: k.lg_wait(("B",u,kap)); break
            for u in us:
                a=acc[u]; C=f"v[{a}:{a+15}]" if (s>0 or cinit[u]) else "0"
                A=self.slot(n); B=self.breg(u,kap)
                if swap: A,B=B,A
                k.e(f"v_mfma_f32_32x32x16_bf16 v[{a}:{a+15}], {A}, {B}, {C}")
                b=budget
                if u==us[-1]:
                    pre=len(k.l)
                    self.n+=1
                    self.issue()
                    if flush_at is not None and s+la==flush_at:
                        while fill: self.place(fill.pop(0))
                    if s+la>=bpre: jit(s+la)
                    b-=4*(len(k.l)-pre)
                if gap>=fill_start: dofill(b)
                gap+=1
        while fill: self.place(fill.pop(0))
```

```python
from asmlib import *
from layout import *
import struct
def fbits(x): return "0x%08x"%struct.unpack("<I",struct.pack("<f",x))[0]

def ws_srd(k, d=8, ptr=(4,5)):
    k.e([f"s_mov_b32 s{d}, s{ptr[0]}", f"s_mov_b32 s{d+1}, s{ptr[1]}", f"s_mov_b32 s{d+2}, {hex(WS_SIZE)}", f"s_mov_b32 s{d+3}, 0x20000"])
def srd(k, d, ptr, size):
    k.e([f"s_mov_b32 s{d}, s{ptr[0]}", f"s_mov_b32 s{d+1}, s{ptr[1]}", f"s_mov_b32 s{d+2}, {hex(size)}", f"s_mov_b32 s{d+3}, 0x20000"])

def cross_half_add(k, v, t):
    k.e([f"v_mov_b32 v{t}, v{v}", "s_nop 1", f"v_permlane32_swap_b32 v{v}, v{t}", "s_nop 1", f"v_add_f32 v{v}, v{v}, v{t}"])

def ln_tile_task(k, layer_tag):
    pass

NWG0=64+72+72+9+64
def gen_k0():
    k=Kern("k0_prep_kernel", nvgpr=128, nsgpr=64)
    END="k0_end"
    k.e([f"s_cmp_ge_u32 s2, {NWG0}", f"s_cbranch_scc1 {END}"])
    k.e(["s_load_dwordx2 s[4:5], s[0:1], 64",
         "s_load_dwordx2 s[12:13], s[0:1], 0",
         "s_load_dwordx2 s[16:17], s[0:1], 8",
         "s_load_dwordx2 s[20:21], s[0:1], 16",
         "s_load_dwordx2 s[24:25], s[0:1], 32",
         "s_load_dwordx2 s[28:29], s[0:1], 40",
         "v_lshrrev_b32 v1, 6, v0", "v_and_b32 v0, 63, v0", "s_nop 0", "v_readfirstlane_b32 s3, v1",
         "s_waitcnt lgkmcnt(0)"])
    ws_srd(k,8,(4,5))
    k.e(["v_lshlrev_b32 v1, 4, v0",
         "v_and_b32 v2, 31, v0",
         "v_lshrrev_b32 v3, 5, v0",
         "v_mov_b32 v4, 0x3f803f80"])
    k.e(["s_cmp_lt_u32 s2, 64","s_cbranch_scc1 k0_x",
         "s_cmp_lt_u32 s2, 217","s_cbranch_scc1 k0_w",
         "s_branch k0_qkv"])
    k.label("k0_x")
    srd(k,36,(12,13),S*D*2)
    k.e(["s_lshl_b32 s14, s2, 5","v_add_u32 v5, s14, v2","s_movk_i32 s15, 1152","v_mul_lo_u32 v5, v5, s15","v_lshlrev_b32 v6, 3, v3","v_add_u32 v5, v5, v6",
         "s_lshl_b32 s18, s3, 5"])
    X=16
    for m in range(9):
        k.e(f"s_add_u32 s19, s18, {m*128}")
        k.e(f"buffer_load_dwordx2 v[{X+4*m}:{X+4*m+1}], v5, s[36:39], s19 offen")
        k.e(f"buffer_load_dwordx2 v[{X+4*m+2}:{X+4*m+3}], v5, s[36:39], s19 offen offset:16")
    k.e([f"s_mul_i32 s22, s2, {AFB}","s_lshl_b32 s23, s3, 10","s_add_u32 s22, s22, s23"])
    k.e(["s_waitcnt vmcnt(0)"])
    k.e(["v_mov_b32 v7, 0"])
    for m in range(9):
        k.e(f"s_add_u32 s19, s22, {WS_X0+m*4096}")
        k.e(f"buffer_store_dwordx4 v[{X+4*m}:{X+4*m+3}], v1, s[8:11], s19 offen")
        for j in range(4): k.e(f"v_dot2c_f32_bf16 v7, v{X+4*m+j}, v4")
    k.e("s_nop 2")
    cross_half_add(k,7,8)
    k.e(["v_lshlrev_b32 v9, 2, v2","s_lshl_b32 s23, s3, 7","v_add_u32 v10, s23, v9","ds_write_b32 v10, v7","s_waitcnt lgkmcnt(0)","s_barrier",
         "ds_read_b32 v11, v9","ds_read_b32 v12, v9 offset:128","ds_read_b32 v13, v9 offset:256","ds_read_b32 v14, v9 offset:384","s_waitcnt lgkmcnt(0)",
         "v_add_f32 v11, v11, v12","v_add_f32 v13, v13, v14","v_add_f32 v11, v11, v13",f"v_mul_f32 v11, {fbits(1.0/576)}, v11"])
    Y=52
    k.e("v_mov_b32 v7, 0")
    for i in range(36):
        k.e([f"v_lshlrev_b32 v{Y+2*i}, 16, v{X+i}", f"v_and_b32 v{Y+2*i+1}, 0xffff0000, v{X+i}",
             f"v_sub_f32 v{Y+2*i}, v{Y+2*i}, v11", f"v_sub_f32 v{Y+2*i+1}, v{Y+2*i+1}, v11",
             f"v_fmac_f32 v7, v{Y+2*i}, v{Y+2*i}", f"v_fmac_f32 v7, v{Y+2*i+1}, v{Y+2*i+1}"])
    cross_half_add(k,7,8)
    k.e(["ds_write_b32 v10, v7 offset:512","s_waitcnt lgkmcnt(0)","s_barrier",
         "ds_read_b32 v12, v9 offset:512","ds_read_b32 v13, v9 offset:640","ds_read_b32 v14, v9 offset:768","ds_read_b32 v15, v9 offset:896","s_waitcnt lgkmcnt(0)",
         "v_add_f32 v12, v12, v13","v_add_f32 v14, v14, v15","v_add_f32 v12, v12, v14",
         f"v_mov_b32 v13, {fbits(1e-5)}", f"v_fmac_f32 v13, {fbits(1.0/576)}, v12","v_rsq_f32 v13, v13","s_nop 1"])
    for i in range(36):
        k.e([f"v_mul_f32 v{Y+2*i}, v{Y+2*i}, v13", f"v_mul_f32 v{Y+2*i+1}, v{Y+2*i+1}, v13", f"v_cvt_pk_bf16_f32 v{X+i}, v{Y+2*i}, v{Y+2*i+1}"])
    for m in range(9):
        k.e(f"s_add_u32 s19, s22, {WS_XN0+m*4096}")
        k.e(f"buffer_store_dwordx4 v[{X+4*m}:{X+4*m+3}], v1, s[8:11], s19 offen")
    k.e(f"s_branch {END}")
    k.label("k0_w")
    k.e(["v_lshrrev_b32 v5, 3, v0","v_and_b32 v6, 7, v0","v_lshlrev_b32 v6, 4, v6",
         "s_mul_i32 s30, s3, 18432",
         "v_lshrrev_b32 v8, 2, v0","v_and_b32 v8, 3, v8",
         "v_lshlrev_b32 v9, 2, v3","v_add_u32 v8, v8, v9","v_lshlrev_b32 v8, 7, v8",
         "v_lshrrev_b32 v9, 4, v0","v_and_b32 v9, 1, v9","v_lshlrev_b32 v9, 5, v9","v_add_u32 v8, v8, v9",
         "v_and_b32 v9, 3, v0","v_lshlrev_b32 v9, 3, v9","v_add_u32 v8, v8, v9","v_add_u32 v7, s30, v8"])
    k.e(["s_cmp_lt_u32 s2, 136","s_cbranch_scc1 k0_w1","s_cmp_lt_u32 s2, 208","s_cbranch_scc1 k0_w2","s_branch k0_wo"])
    def process_units(k, dst_calc, colsum=False):
        k.e("s_waitcnt vmcnt(0)")
        if colsum: k.e(["v_mov_b32 v12, 0","v_mov_b32 v13, 0"])
        for m in range(9):
            for f in range(2):
                b=16+8*(m%2)*2+f*8
                b=16+((2*m+f)%8)*4
                k.e(f"ds_read_b64_tr_b16 v[{b}:{b+1}], v7 offset:{m*2048+f*64}")
                k.e(f"ds_read_b64_tr_b16 v[{b+2}:{b+3}], v7 offset:{m*2048+f*64+1024}")
                dst_calc(m,f)
                k.e("s_waitcnt lgkmcnt(0)")
                k.e(f"buffer_store_dwordx4 v[{b}:{b+3}], v1, s[8:11], s19 offen")
                if colsum:
                    for j in range(4): k.e(f"v_dot2c_f32_bf16 v{12+f}, v{b+j}, v4")
    k.label("k0_w1")
    srd(k,36,(24,25),D*F*2)
    k.e(["s_sub_u32 s14, s2, 64",
         "s_movk_i32 s15, 9216","v_mul_lo_u32 v10, v5, s15","v_add_u32 v10, v10, v6",
         "s_lshl_b32 s18, s14, 7","s_mul_i32 s19, s3, %d"%(16*9216),"s_add_u32 s18, s18, s19"])
    for m in range(9):
        for q in range(2):
            k.e([f"s_add_u32 s19, s18, {m*64*9216+q*8*9216}", f"s_add_u32 m0, s30, {m*2048+q*1024}", "s_nop 0",
                 "buffer_load_dwordx4 v10, s[36:39], s19 offen lds"])
    k.e(["s_mul_i32 s22, s14, 57","s_lshr_b32 s22, s22, 9",
         "s_mul_i32 s23, s22, 9","s_sub_u32 s23, s14, s23",
         f"s_mul_i32 s26, s22, {4*W12_WAVE}"])
    assert all((cb*57>>9)==cb//9 for cb in range(72))
    k.e(["s_and_b32 s27, s23, 1","s_lshl_b32 s27, s27, 1",f"s_mul_i32 s27, s27, {W12_WAVE}",
         "s_lshr_b32 s31, s23, 1","s_mul_i32 s31, s31, 36","s_add_u32 s31, s31, 18","s_lshl_b32 s31, s31, 10",
         "s_add_u32 s27, s27, s31","s_add_u32 s27, s27, s26"])
    def dst_w1(m,f):
        k.e([f"s_add_u32 s32, s3, {4*m}"])
        k.e([f"s_xor_b32 s33, s32, {f}","s_lshl_b32 s33, s33, 10","s_add_u32 s33, s33, s27"])
        if f: k.e(f"s_add_u32 s33, s33, {W12_WAVE}")
        k.e(["s_and_b32 s34, s32, 1",f"s_add_u32 s34, s34, {2*f}",f"s_mul_i32 s34, s34, {W12_WAVE}","s_lshr_b32 s35, s32, 1","s_lshl_b32 s35, s35, 10",
             "s_add_u32 s34, s34, s35","s_add_u32 s34, s34, s26",
             "s_cmp_eq_u32 s23, 8","s_cselect_b32 s19, s34, s33",f"s_add_u32 s19, s19, {WS_W12}"])
    process_units(k,dst_w1,colsum=True)
    k.e("s_nop 2")
    cross_half_add(k,12,14); cross_half_add(k,13,14)
    k.e(["v_cmp_gt_u32 vcc, 32, v0","s_nop 1","v_cndmask_b32 v12, v13, v12, vcc",
         "v_lshlrev_b32 v14, 2, v0","v_add_u32 v15, s30, v14","ds_write_b32 v15, v12","s_waitcnt lgkmcnt(0)","s_barrier",
         "s_cmp_lg_u32 s3, 0",f"s_cbranch_scc1 {END}",
         "ds_read_b32 v16, v14","ds_read_b32 v17, v14 offset:18432","ds_read_b32 v18, v14 offset:36864","ds_read_b32 v19, v14 offset:55296","s_waitcnt lgkmcnt(0)",
         "v_add_f32 v16, v16, v17","v_add_f32 v18, v18, v19","v_add_f32 v16, v16, v18",
         "v_lshlrev_b32 v20, 7, v3","v_lshrrev_b32 v21, 2, v2","v_and_b32 v21, 1, v21","v_lshlrev_b32 v21, 6, v21","v_add_u32 v20, v20, v21",
         "v_and_b32 v21, 3, v2","v_lshrrev_b32 v22, 3, v2","v_lshlrev_b32 v22, 2, v22","v_add_u32 v21, v21, v22","v_lshlrev_b32 v21, 2, v21","v_add_u32 v20, v20, v21",
         "s_lshl_b32 s19, s14, 8",f"s_add_u32 s19, s19, {WS_CS1}","buffer_store_dword v16, v20, s[8:11], s19 offen",
         f"s_branch {END}"])
    k.label("k0_w2")
    srd(k,36,(28,29),F*D*2)
    k.e(["s_sub_u32 s14, s2, 136","s_lshl_b32 s14, s14, 2","s_add_u32 s14, s14, s3",
         "s_movk_i32 s15, 1152","v_mul_lo_u32 v10, v5, s15","v_add_u32 v10, v10, v6",
         "s_mul_i32 s18, s14, %d"%(16*1152)])
    for m in range(9):
        for q in range(2):
            k.e([f"s_add_u32 s19, s18, {m*128+q*8*1152}", f"s_add_u32 m0, s30, {m*2048+q*1024}", "s_nop 0",
                 "buffer_load_dwordx4 v10, s[36:39], s19 offen lds"])
    assert all((x*911>>15)==x//36 for x in range(288))
    k.e(["s_mul_i32 s22, s14, 911","s_lshr_b32 s22, s22, 15","s_mul_i32 s23, s22, 36","s_sub_u32 s23, s14, s23",
         f"s_mul_i32 s26, s22, {4*W12_WAVE}",f"s_add_u32 s26, s26, {WS_W12}"])
    def dst_w2(m,f):
        nb=m
        if nb==8:
            k.e(["s_and_b32 s34, s23, 1",f"s_add_u32 s34, s34, {2*f}",f"s_mul_i32 s34, s34, {W12_WAVE}","s_lshr_b32 s35, s23, 1",f"s_add_u32 s35, s35, {162+36}","s_lshl_b32 s35, s35, 10",
                 "s_add_u32 s34, s34, s35","s_add_u32 s19, s34, s26"])
        else:
            w=2*(nb&1)+f; rnd=nb>>1
            k.e(f"s_xor_b32 s33, s23, {f}")
            if rnd==0:
                k.e(["s_sub_u32 s34, s33, 8","s_add_u32 s35, s33, 4","s_cmp_ge_u32 s33, 32","s_cselect_b32 s34, s34, s35","s_cmp_lt_u32 s33, 24","s_cselect_b32 s33, s33, s34",
                     f"s_add_u32 s33, s33, 162"])
            else:
                k.e(f"s_add_u32 s33, s33, {162+36+18+(rnd-1)*36}")
            k.e(["s_lshl_b32 s33, s33, 10",f"s_add_u32 s33, s33, {w*W12_WAVE}","s_add_u32 s19, s33, s26"])
    process_units(k,dst_w2)
    k.e(f"s_branch {END}")
    k.label("k0_wo")
    srd(k,36,(20,21),D*D*2)
    k.e(["s_sub_u32 s14, s2, 208","s_lshl_b32 s14, s14, 2","s_add_u32 s14, s14, s3"])
    for q in range(2):
        k.e([f"v_add_u32 v11, {8*q}, v5",
             "s_mul_i32 s18, s14, 18","v_add_u32 v12, s18, v11",
             "v_lshrrev_b32 v13, 2, v11","v_and_b32 v13, 1, v13","v_lshlrev_b32 v13, 2, v13",
             "v_and_b32 v14, 3, v11",f"v_add_u32 v14, {4*q}, v14",
             "v_lshrrev_b32 v15, 1, v14","v_add_u32 v13, v13, v15",
             "s_sub_u32 s18, s14, 32","s_lshl_b32 s18, s18, 3","v_add_u32 v13, s18, v13","v_mul_u32_u24 v13, 18, v13","v_and_b32 v14, 1, v14","v_add_u32 v13, v13, v14","v_add_u32 v13, 16, v13",
             "s_cmp_lt_u32 s14, 32","s_cselect_b64 vcc, -1, 0","v_cndmask_b32 v12, v13, v12, vcc",
             "s_movk_i32 s15, 1152",f"v_mul_lo_u32 v{40+q}, v12, s15",f"v_add_u32 v{40+q}, v{40+q}, v6"])
    for m in range(9):
        for q in range(2):
            k.e([f"s_movk_i32 s19, {m*128}", f"s_add_u32 m0, s30, {m*2048+q*1024}", "s_nop 0",
                 f"buffer_load_dwordx4 v{40+q}, s[36:39], s19 offen lds"])
    def dst_wo(m,f):
        nt=2*m+f
        k.e(["s_lshl_b32 s19, s14, 10",f"s_add_u32 s19, s19, {WS_WO+nt*AFB}"])
    process_units(k,dst_wo)
    k.e(f"s_branch {END}")
    k.label("k0_qkv")
    srd(k,36,(16,17),D*3*D*2)
    k.e(["s_sub_u32 s14, s2, 217","s_lshr_b32 s15, s14, 3","s_and_b32 s14, s14, 7"])
    k.e(["s_lshl_b32 s18, s15, 2","s_add_u32 s19, s18, s14","s_mul_i32 s19, s19, 18",
         "v_add_u32 v10, s19, v2","v_add_u32 v11, 560, v10","v_cmp_gt_u32 vcc, 16, v2","s_nop 1","v_cndmask_b32 v10, v11, v10, vcc",
         "v_lshrrev_b32 v12, 1, v2","v_lshrrev_b32 v13, 1, v12","v_and_b32 v13, 1, v13","v_mul_u32_u24 v13, 576, v13",
         "v_and_b32 v14, 1, v12","v_lshrrev_b32 v15, 2, v12","v_lshlrev_b32 v15, 1, v15","v_add_u32 v14, v14, v15","v_add_u32 v14, s18, v14","v_mul_u32_u24 v14, 18, v14",
         "v_add_u32 v13, v13, v14","v_and_b32 v14, 1, v2","v_add_u32 v13, v13, v14","v_add_u32 v13, 16, v13",
         "v_mov_b32 v16, 0x20000000","v_cndmask_b32 v13, v16, v13, vcc",
         "s_sub_u32 s19, s14, 5","s_lshl_b32 s19, s19, 5","v_add_u32 v14, s19, v2","s_mul_i32 s22, s15, 72","s_add_u32 s22, s22, 1152","v_add_u32 v15, s22, v14",
         "v_cmp_gt_u32 vcc, 72, v14","s_nop 1","v_cndmask_b32 v15, v16, v15, vcc",
         "s_cmp_eq_u32 s14, 4","s_cselect_b64 vcc, -1, 0","v_cndmask_b32 v15, v15, v13, vcc",
         "s_cmp_lt_u32 s14, 4","s_cselect_b64 vcc, -1, 0","v_cndmask_b32 v10, v15, v10, vcc",
         "v_lshlrev_b32 v10, 1, v10",
         "v_mul_u32_u24 v11, %d, v3"%(4*3456),"v_add_u32 v10, v10, v11"])
    k.e(["s_lshl_b32 s22, s15, 2","s_and_b32 s23, s14, 3","s_add_u32 s22, s22, s23",f"s_mul_i32 s22, s22, {WQKV_WAVE}",
         "s_lshr_b32 s23, s14, 2","s_mul_i32 s23, s23, 36","s_add_u32 s23, s23, s3","s_lshl_b32 s23, s23, 10","s_add_u32 s22, s22, s23",f"s_add_u32 s22, s22, {WS_WQKV}",
         "s_mul_i32 s18, s3, %d"%(16*3456)])
    for m in range(9):
        for jj in range(8):
            off=m*64*3456+((jj&3)+8*(jj>>2))*3456
            k.e([f"s_add_u32 s19, s18, {off}", f"buffer_load_ushort v{52+8*m+jj}, v10, s[36:39], s19 offen"])
    k.e("s_waitcnt vmcnt(0)")
    for m in range(9):
        b=16+4*m
        for j in range(4):
            k.e(f"v_lshl_or_b32 v{b+j}, v{52+8*m+2*j+1}, 16, v{52+8*m+2*j}")
        k.e([f"s_add_u32 s19, s22, {m*4096}", f"buffer_store_dwordx4 v[{b}:{b+3}], v1, s[8:11], s19 offen"])
    k.label(END)
    k.e("s_endpgm")
    return k, NWG0, 256, 73728
```

```python
from asmlib import *
from layout import *
from gemm import *
from k0 import fbits, ws_srd
def gen_k1(layer):
    k=Kern(f"k1_qkv{layer}_kernel", nvgpr=256, nagpr=256, nsgpr=64)
    XN = WS_XN0 if layer==0 else LB(0)+L_XN2
    B=LB(layer)
    END=k.name+"_end"
    k.e([f"s_cmp_ge_u32 s2, 256", f"s_cbranch_scc1 {END}",
         "s_load_dwordx2 s[4:5], s[0:1], 64"]); k.stamp(0)
    k.e(["v_lshrrev_b32 v1, 6, v0","v_and_b32 v0, 63, v0","s_nop 0","v_readfirstlane_b32 s3, v1",
         "v_lshlrev_b32 v1, 4, v0","v_and_b32 v2, 31, v0","v_lshrrev_b32 v3, 5, v0",
         "s_lshr_b32 s12, s2, 3","s_and_b32 s13, s2, 7",
         "s_waitcnt lgkmcnt(0)"])
    ws_srd(k,8,(4,5))
    RING=16; R=18; ACC0=96; ACC1=128; BT=160
    st=Stream(k,RING,R,72,btail=BT)
    k.e([f"s_mul_i32 s14, s12, {2*AFB}",f"s_add_u32 s14, s14, {XN}","s_lshl_b32 s15, s3, 10","s_add_u32 s14, s14, s15"])
    for i in range(18):
        k.e([f"s_add_u32 m0, s15, {i*4096}", f"s_add_u32 s16, s14, {i*4096}"])
        k.vm_op("buffer_load_dwordx4 v1, s[8:11], s16 offen lds","X")
    k.e(["s_lshl_b32 s20, s13, 2","s_add_u32 s20, s20, s3",f"s_mul_i32 s20, s20, {WQKV_WAVE}",f"s_add_u32 s20, s20, {WS_WQKV}"])
    st.prefetch()
    k.e(["s_lshl_b32 s21, s13, 2","s_add_u32 s22, s21, s3",
         "s_lshl_b32 s23, s12, 1",
         "s_lshl_b32 s24, s22, 16","s_lshl_b32 s25, s23, 10","s_add_u32 s24, s24, s25",f"s_add_u32 s24, s24, {B+L_Q1}",
         f"s_mul_i32 s25, s22, {KV_HEAD}",f"s_mul_i32 s26, s23, {KVREC}","s_add_u32 s25, s25, s26",f"s_add_u32 s25, s25, {B+L_KV}",
         f"s_mov_b32 s27, {fbits(QSCALE)}"])
    k.stamp(1)
    k.vm_wait("X"); k.e("s_barrier"); k.stamp(2)
    bj=lambda u,kap: f"ds_read_b128 {st.breg(u,kap)}, v1 offset:{u*AFB+kap*1024}" if u*AFB+kap*1024<65536 else f"ds_read_b128 {st.breg(u,kap)}, v4 offset:{u*AFB+kap*1024-32768}"
    k.e("v_add_u32 v4, 32768, v1")
    st.tile((ACC0,ACC0+16),list(range(36)),bjit=bj,la=4,at={18:[('call',lambda:k.stamp(10))]})
    k.stamp(3)
    PK=192
    def epi_qk():
        f=[]
        for u in range(2):
            a=ACC0+16*u; p=PK+8*u
            for i in range(8): f.append(f"v_mul_f32 v{a+i}, s27, v{a+i}")
            for j in range(4): f.append(f"v_cvt_pk_bf16_f32 v{p+j}, v{a+2*j}, v{a+2*j+1}")
            for j in range(4): f.append(f"v_cvt_pk_bf16_f32 v{p+4+j}, v{a+8+2*j}, v{a+8+2*j+1}")
            f.append(("vm",f"buffer_store_dwordx4 v[{p}:{p+3}], v1, s[8:11], s24 offen offset:{u*1024}",None))
            f.append(("vm",f"buffer_store_dwordx4 v[{p+4}:{p+7}], v1, s[8:11], s25 offen offset:{u*KVREC}",None))
        return f
    LV=k.name+"_v"; JOIN=k.name+"_j"
    k.e(["s_cmp_lg_u32 s3, 0",f"s_cbranch_scc1 {LV}"])
    save=(list(k.vm),list(k.lg),st.n,st.issued)
    ff=epi_qk(); import os
    if os.environ.get('NOST'): ff=[x for x in ff if isinstance(x,str)]
    st.tile((ACC1,ACC1+16),list(range(36)),fillers=ff,at={9:[('call',lambda:k.stamp(4))],18:[('call',lambda:k.stamp(5))],27:[('call',lambda:k.stamp(6))]})
    k.stamp(7)
    k.e(["v_mov_b32 v5, 1.0","v_mov_b32 v6, s27","v_cmp_gt_u32 vcc, 32, v0","s_nop 1","v_cndmask_b32 v5, v5, v6, vcc",
         "s_lshl_b32 s28, s21, 13","s_lshl_b32 s29, s23, 7","s_add_u32 s28, s28, s29",f"s_add_u32 s28, s28, {B+L_Q2}",
         f"s_mul_i32 s29, s21, {KV_HEAD}",f"s_mul_i32 s30, s23, {KVREC}","s_add_u32 s29, s29, s30",f"s_add_u32 s29, s29, {B+L_KV+2304}",
         "v_mov_b32 v7, s29","v_mov_b32 v8, s28","v_cndmask_b32 v7, v7, v8, vcc","v_lshlrev_b32 v8, 2, v2","v_add_u32 v7, v7, v8",
         f"v_mov_b32 v8, {KV_HEAD}","v_mov_b32 v9, 8192","v_cndmask_b32 v8, v8, v9, vcc",
         f"v_mov_b32 v9, {KVREC}","v_mov_b32 v10, 128","v_cndmask_b32 v9, v9, v10, vcc","s_nop 7"])
    for u in range(2):
        a=ACC1+16*u
        for i in range(8): k.e(f"v_mul_f32 v{a+i}, v5, v{a+i}")
        for j in range(4): k.e(f"v_cvt_pk_bf16_f32 v{PK+j}, v{a+2*j}, v{a+2*j+1}")
        k.e(f"v_mov_b32 v10, v7")
        for j in range(4):
            k.e(f"buffer_store_dword v{PK+j}, v10, s[8:11], 0 offen")
            k.e("v_add_u32 v10, v10, v8")
        k.e("v_add_u32 v7, v7, v9")
    k.stamp(8); k.e("s_waitcnt vmcnt(0)") if Kern.STAMPS else None; k.stamp(9); k.stamp_dump()
    k.e(f"s_branch {END}")
    k.label(LV)
    k.vm,k.lg,st.n,st.issued=list(save[0]),list(save[1]),save[2],save[3]
    st.tile((ACC1,ACC1+16),list(range(36)),fillers=ff,swap=True)
    k.e(["s_sub_u32 s28, s3, 1","s_lshl_b32 s28, s28, 5","v_add_u32 v5, s28, v2",
         "v_mul_u32_u24 v6, 57, v5","v_lshrrev_b32 v6, 10, v6",
         "v_mul_u32_u24 v7, 18, v6","v_sub_u32 v7, v5, v7",
         "v_subrev_u32 v8, 72, v5","v_mov_b32 v9, 18",
         "v_cmp_gt_u32 vcc, 72, v5","s_nop 1","v_cndmask_b32 v6, v8, v6, vcc","v_cndmask_b32 v7, v9, v7, vcc",
         "s_mov_b64 s[32:33], vcc",
         f"s_mov_b32 s30, {KV_HEAD}","v_mul_lo_u32 v6, v6, s30","v_lshlrev_b32 v7, 4, v7","v_add_u32 v6, v6, v7",
         "v_mul_u32_u24 v7, 320, v3","v_add_u32 v6, v6, v7",
         "v_mov_b32 v8, 0x7f000000","v_cmp_gt_u32 vcc, 76, v5","s_nop 1","v_cndmask_b32 v6, v8, v6, vcc",
         f"s_mul_i32 s28, s21, {KV_HEAD}",f"s_mul_i32 s29, s23, {KVREC}","s_add_u32 s28, s28, s29",f"s_add_u32 s28, s28, {B+L_KV+1024}",
         "v_mov_b32 v9, 0x3f803f80","s_nop 4"])
    for u in range(2):
        a=ACC1+16*u
        for j in range(8): k.e(f"v_cvt_pk_bf16_f32 v{PK+j}, v{a+2*j}, v{a+2*j+1}")
        for j in range(8): k.e(f"v_cndmask_b32 v{PK+j}, v9, v{PK+j}, s[32:33]")
        k.e(f"buffer_store_dwordx4 v[{PK}:{PK+3}], v6, s[8:11], s28 offen offset:{u*KVREC}")
        k.e(f"buffer_store_dwordx4 v[{PK+4}:{PK+7}], v6, s[8:11], s28 offen offset:{u*KVREC+640}")
        k.e("s_nop 1")
    k.label(END); k.e("s_endpgm")
    return k,256,256,73728
```

```python
from asmlib import *
from layout import *
from k0 import fbits, ws_srd
Q1=8; Q2=12; K1=16; K2=20; V0=24; V1=28; S=(32,48); P=64; O=72
AK1=4; AK2=5; AV=6
def mf16(d,a,b,c): return f"v_mfma_f32_32x32x16_bf16 v[{d}:{d+15}], v[{a}:{a+3}], v[{b}:{b+3}], {c}"
def mf8(d,a,b,c): return f"v_mfma_f32_32x32x8_bf16 v[{d}:{d+15}], v[{a}:{a+1}], v[{b}:{b+1}], {c}"
def acc(d): return f"v[{d}:{d+15}]"
def tile_body(t):
    c=S[t&1]; n=S[(t+1)&1]
    ex=lambda i: f"v_exp_f32 v{c+i}, v{c+i}"
    cv=lambda j: f"v_cvt_pk_bf16_f32 v{P+j}, v{c+2*j}, v{c+2*j+1}"
    o=[]
    o+=[ex(0),ex(1), mf16(O,V1,P+4,acc(O)),
        f"ds_read_b128 v[{V0}:{V0+3}], v{AV} offset:{t*KVREC}", f"ds_read_b128 v[{V1}:{V1+3}], v{AV} offset:{t*KVREC+640}",
        ex(2),ex(3),cv(0),"s_waitcnt lgkmcnt(2)", mf16(n,K1,Q1,"0"),
        ex(4),ex(5),cv(1),ex(6),ex(7), mf8(n,K2,Q2,acc(n)),
        f"ds_read_b128 v[{K1}:{K1+3}], v{AK1} offset:{(t+2)*KVREC}", f"ds_read_b32 v{K2}, v{AK2} offset:{(t+2)*KVREC}",
        cv(2),ex(8),cv(3),ex(9),ex(10),"s_waitcnt lgkmcnt(2)", mf16(O,V0,P,acc(O)),
        ex(11),cv(4),ex(12),ex(13),cv(5),ex(14),ex(15),cv(6),cv(7)]
    return o
def gen_k2(layer):
    k=Kern(f"k2_attn{layer}_kernel", nvgpr=128, nsgpr=64)
    B=LB(layer); END=k.name+"_end"
    k.e([f"s_cmp_ge_u32 s2, 256", f"s_cbranch_scc1 {END}",
         "s_load_dwordx2 s[4:5], s[0:1], 64"]); k.stamp(0)
    k.e(["v_lshrrev_b32 v1, 6, v0","v_and_b32 v0, 63, v0","s_nop 0","v_readfirstlane_b32 s3, v1",
         "v_lshlrev_b32 v1, 4, v0","v_and_b32 v2, 31, v0","v_lshrrev_b32 v3, 5, v0",
         "s_and_b32 s12, s2, 7","s_lshl_b32 s12, s12, 2","s_lshr_b32 s13, s2, 3","s_and_b32 s13, s13, 3","s_add_u32 s12, s12, s13",
         "s_lshr_b32 s13, s2, 5","s_lshl_b32 s13, s13, 3","s_add_u32 s13, s13, s3",
         "s_lshl_b32 s14, s12, 16","s_lshl_b32 s15, s13, 10","s_add_u32 s14, s14, s15",f"s_add_u32 s14, s14, {B+L_Q1}",
         "s_lshl_b32 s15, s12, 13","s_lshl_b32 s16, s13, 7","s_add_u32 s15, s15, s16",f"s_add_u32 s15, s15, {B+L_Q2}",
         "v_lshlrev_b32 v7, 2, v2","v_mov_b32 v93, 0x7f000000","v_cmp_gt_u32 vcc, 32, v0",
         f"s_mul_i32 s16, s12, {KV_HEAD}","s_lshl_b32 s17, s3, 10","s_add_u32 s16, s16, s17",f"s_add_u32 s16, s16, {B+L_KV}",
         "v_cndmask_b32 v93, v93, v7, vcc",
         "s_waitcnt lgkmcnt(0)"])
    ws_srd(k,8,(4,5))
    k.e([f"buffer_load_dwordx4 v[{Q1}:{Q1+3}], v1, s[8:11], s14 offen", f"buffer_load_dword v{Q2}, v93, s[8:11], s15 offen"])
    for n in range(19):
        k.e([f"s_add_u32 m0, s17, {n*8192}", f"s_add_u32 s18, s16, {n*8192}", "buffer_load_dwordx4 v1, s[8:11], s18 offen lds"])
    k.e([f"v_mov_b32 v{AK1}, v1", f"v_add_u32 v{AK2}, 2304, v7", "v_mul_u32_u24 v94, 320, v3","v_lshlrev_b32 v95, 4, v2","v_add_u32 v94, v94, v95",f"v_add_u32 v{AV}, 1024, v94",
         f"v_mov_b32 v{Q2+1}, 0", f"v_mov_b32 v{K2+1}, 0"])
    for i in range(16): k.e(f"v_mov_b32 v{O+i}, 0")
    for i in range(4): k.e([f"v_mov_b32 v{P+4+i}, 0", f"v_mov_b32 v{V1+i}, 0"])
    k.stamp(1)
    k.e(["s_waitcnt vmcnt(16)","s_barrier"]); k.stamp(2)
    k.e([f"ds_read_b128 v[{K1}:{K1+3}], v{AK1}", f"ds_read_b32 v{K2}, v{AK2}", "s_waitcnt lgkmcnt(0)",
         mf16(S[0],K1,Q1,"0"), mf8(S[0],K2,Q2,acc(S[0])),
         f"ds_read_b128 v[{K1}:{K1+3}], v{AK1} offset:{KVREC}", f"ds_read_b32 v{K2}, v{AK2} offset:{KVREC}",
         "s_mov_b32 s20, 0","s_nop 10"])
    LOOP=k.name+"_loop"; SK=k.name+"_sk"
    body=[]
    for t in range(8): body+=tile_body(t)
    k.e(".p2align 6")
    k.label(LOOP); k.e(body)
    k.e([f"v_add_u32 v{AK1}, {8*KVREC}, v{AK1}", f"v_add_u32 v{AK2}, {8*KVREC}, v{AK2}", f"v_add_u32 v{AV}, {8*KVREC}, v{AV}",
         "s_cmp_lg_u32 s20, 0", f"s_cbranch_scc1 {SK}", "s_waitcnt vmcnt(0)","s_barrier"])
    k.label(SK)
    k.e(["s_add_u32 s20, s20, 1","s_cmp_lt_u32 s20, 8",f"s_cbranch_scc1 {LOOP}"])
    k.e(["s_nop 0", mf16(O,V1,P+4,acc(O))]); k.stamp(3)
    k.e(["s_waitcnt lgkmcnt(0)","s_nop 10"])
    CHK=k.name+"_chk"; FIN=k.name+"_fin"; SLOW=k.name+"_slow"
    def lbcast():
        k.e([f"v_mov_b32 v32, v{O+10}", f"v_mov_b32 v33, v{O+10}", "s_nop 1", "v_permlane32_swap_b32 v32, v33", "s_nop 1"])
    lbcast()
    k.e([f"v_mov_b32 v34, {fbits(2.0**-64)}", f"v_mov_b32 v35, {fbits(2.0**64)}", f"v_mov_b32 v36, {fbits(2.0**126)}",
         "v_cmp_ge_f32 s[22:23], v32, v34","v_cmp_le_f32 s[24:25], v32, v35","s_nop 1","s_and_b64 s[22:23], s[22:23], s[24:25]"])
    for i in range(8):
        k.e([f"v_cmp_lt_f32 s[24:25], |v{O+i}|, v36","s_nop 1","s_and_b64 s[22:23], s[22:23], s[24:25]"])
    k.e(["v_cmp_lt_u32 s[26:27], 31, v0"])
    for i in (8,9):
        k.e([f"v_cmp_lt_f32 s[24:25], |v{O+i}|, v36","s_nop 1","s_or_b64 s[24:25], s[24:25], s[26:27]","s_and_b64 s[22:23], s[22:23], s[24:25]"])
    k.e(["s_cmp_eq_u64 s[22:23], -1", f"s_cbranch_scc0 {SLOW}"])
    k.label(FIN)
    k.e(["v_rcp_f32 v33, v32","s_nop 0"])
    for i in range(10): k.e(f"v_mul_f32 v{O+i}, v{O+i}, v33")
    for j in range(5): k.e(f"v_cvt_pk_bf16_f32 v{40+j}, v{O+2*j}, v{O+2*j+1}")
    k.e([f"s_mul_i32 s14, s13, {AFB}","s_lshl_b32 s15, s12, 10","s_add_u32 s15, s15, s14",f"s_add_u32 s15, s15, {B+L_O}",
         "buffer_store_dwordx4 v[40:43], v1, s[8:11], s15 offen",
         "s_lshr_b32 s16, s12, 3","s_add_u32 s16, s16, 32","s_lshl_b32 s16, s16, 10","s_add_u32 s16, s16, s14",
         "s_lshr_b32 s17, s12, 2","s_and_b32 s17, s17, 1","s_lshl_b32 s17, s17, 9","s_add_u32 s16, s16, s17",
         "s_and_b32 s17, s12, 3","s_lshl_b32 s17, s17, 2","s_add_u32 s16, s16, s17",f"s_add_u32 s16, s16, {B+L_O}",
         "v_lshlrev_b32 v7, 4, v2","v_mov_b32 v93, 0x7f000000","v_cmp_gt_u32 vcc, 32, v0","s_nop 1","v_cndmask_b32 v93, v93, v7, vcc",
         "buffer_store_dword v44, v93, s[8:11], s16 offen"])
    k.stamp(4); k.stamp_dump()
    k.e(f"s_branch {END}")
    k.label(SLOW)
    k.e([f"v_mov_b32 v{AK1}, v1","v_lshlrev_b32 v7, 2, v2",f"v_add_u32 v{AK2}, 2304, v7", "v_mul_u32_u24 v94, 320, v3","v_lshlrev_b32 v95, 4, v2","v_add_u32 v94, v94, v95",f"v_add_u32 v{AV}, 1024, v94",
         "v_mov_b32 v90, 0xff7fffff","s_mov_b32 s20, 0"])
    for i in range(16): k.e(f"v_mov_b32 v{O+i}, 0")
    SL=k.name+"_sl"
    k.label(SL)
    c=S[0]
    k.e([f"ds_read_b128 v[{K1}:{K1+3}], v{AK1}", f"ds_read_b32 v{K2}, v{AK2}", f"ds_read_b128 v[{V0}:{V0+3}], v{AV}", f"ds_read_b128 v[{V1}:{V1+3}], v{AV} offset:640",
         "s_waitcnt lgkmcnt(0)", mf16(c,K1,Q1,"0"), mf8(c,K2,Q2,acc(c)), "s_nop 11"])
    k.e(f"v_max_f32 v91, v{c}, v{c+1}")
    for i in range(2,16,2): k.e(f"v_max3_f32 v91, v91, v{c+i}, v{c+i+1}")
    k.e(["v_mov_b32 v92, v91","s_nop 1","v_permlane32_swap_b32 v91, v92","s_nop 1","v_max3_f32 v91, v91, v92, v90",
         "v_sub_f32 v92, v90, v91","v_exp_f32 v92, v92","v_mov_b32 v90, v91","s_nop 0"])
    for i in range(16): k.e(f"v_mul_f32 v{O+i}, v{O+i}, v92")
    for i in range(16): k.e(f"v_sub_f32 v{c+i}, v{c+i}, v91")
    for i in range(16): k.e(f"v_exp_f32 v{c+i}, v{c+i}")
    k.e("s_nop 0")
    for j in range(8): k.e(f"v_cvt_pk_bf16_f32 v{P+j}, v{c+2*j}, v{c+2*j+1}")
    k.e(["s_nop 1", mf16(O,V0,P,acc(O)), mf16(O,V1,P+4,acc(O)),
         f"v_add_u32 v{AK1}, {KVREC}, v{AK1}", f"v_add_u32 v{AK2}, {KVREC}, v{AK2}", f"v_add_u32 v{AV}, {KVREC}, v{AV}",
         "s_nop 9","s_add_u32 s20, s20, 1","s_cmp_lt_u32 s20, 64",f"s_cbranch_scc1 {SL}","s_nop 4"])
    lbcast()
    k.e(f"s_branch {FIN}")
    k.label(END); k.e("s_endpgm")
    p=check_hazards(body+body,k.name+"(loop)")
    for x in p: print("HAZARD",x)
    return k,256,512,163840
```

```python
from asmlib import *
from layout import *
from gemm import *
from k0 import fbits, ws_srd, cross_half_add
def gen_k3(layer):
    k=Kern(f"k3_wo{layer}_kernel", nvgpr=256, nagpr=256, nsgpr=64)
    XIN = WS_X0 if layer==0 else LB(0)+L_X2
    B=LB(layer); END=k.name+"_end"
    k.e([f"s_cmp_ge_u32 s2, 192", f"s_cbranch_scc1 {END}",
         "s_load_dwordx2 s[4:5], s[0:1], 64"]); k.stamp(0)
    k.e(["v_lshrrev_b32 v1, 6, v0","v_and_b32 v0, 63, v0","s_nop 0","v_readfirstlane_b32 s3, v1",
         "v_lshlrev_b32 v1, 4, v0","v_and_b32 v2, 31, v0","v_lshrrev_b32 v3, 5, v0",
         "s_lshr_b32 s12, s2, 3","s_mul_i32 s13, s12, 43","s_lshr_b32 s13, s13, 8",
         "s_mul_i32 s14, s13, 6","s_sub_u32 s14, s12, s14",
         "s_lshl_b32 s13, s13, 3","s_and_b32 s12, s2, 7","s_add_u32 s12, s12, s13",
         "s_mul_i32 s13, s14, 3","s_add_u32 s13, s13, s3",
         "s_waitcnt lgkmcnt(0)"])
    assert all((r*43>>8)==r//6 for r in range(24))
    ws_srd(k,8,(4,5))
    RING=16; R=18; ACC0=96; BT=160
    st=Stream(k,RING,R,36,btail=BT)
    k.e([f"s_mul_i32 s14, s12, {2*AFB}",f"s_add_u32 s15, s14, {B+L_O}","s_lshl_b32 s16, s3, 10","s_add_u32 s15, s15, s16"])
    for i in range(24):
        k.e([f"s_add_u32 m0, s16, {i*3072}", f"s_add_u32 s17, s15, {i*3072}"])
        k.vm_op("buffer_load_dwordx4 v1, s[8:11], s17 offen lds","X")
    k.e([f"s_mul_i32 s20, s13, {AFB}",f"s_add_u32 s20, s20, {WS_WO}"])
    st.prefetch(6)
    RES=200
    k.e(["s_lshl_b32 s21, s13, 11","s_add_u32 s21, s21, s14",f"s_add_u32 s22, s21, {XIN}",f"s_add_u32 s23, s22, {AFB}",f"s_add_u32 s24, s21, {B+L_X1}",f"s_add_u32 s25, s24, {AFB}"])
    for u in range(2):
        for s in range(2):
            k.vm_op(f"buffer_load_dwordx4 v[{RES+8*u+4*s}:{RES+8*u+4*s+3}], v1, s[8:11], s{22+u} offen offset:{s*1024}","R")
    k.vm_wait("X"); k.e("s_barrier"); k.stamp(1)
    st.prefetch(12)
    k.e("v_add_u32 v4, 32768, v1")
    bj=lambda u,kap: f"ds_read_b128 {st.breg(u,kap)}, v1 offset:{u*AFB+kap*1024}" if u*AFB+kap*1024<65536 else f"ds_read_b128 {st.breg(u,kap)}, v4 offset:{u*AFB+kap*1024-32768}"
    st.tile((ACC0,ACC0+16),list(range(36)),bjit=bj,la=4)
    k.stamp(2)
    k.vm_wait("R")
    k.e(["s_lshl_b32 s26, s12, 6","v_add_u32 v5, s26, v2","v_mul_u32_u24 v5, 144, v5","s_lshl_b32 s26, s13, 3",f"s_add_u32 s26, s26, {B+L_ST}","s_nop 5"])
    PK=224
    for u in range(2):
        a=ACC0+16*u; r=RES+8*u
        for j in range(8):
            k.e([f"v_lshlrev_b32 v6, 16, v{r+j}", f"v_and_b32 v7, 0xffff0000, v{r+j}", f"v_add_f32 v{a+2*j}, v{a+2*j}, v6", f"v_add_f32 v{a+2*j+1}, v{a+2*j+1}, v7"])
        for j in range(8): k.e(f"v_cvt_pk_bf16_f32 v{PK+j}, v{a+2*j}, v{a+2*j+1}")
        k.e(f"buffer_store_dwordx4 v[{PK}:{PK+3}], v1, s[8:11], s{24+u} offen")
        k.e(f"buffer_store_dwordx4 v[{PK+4}:{PK+7}], v1, s[8:11], s{24+u} offen offset:1024")
        k.e(f"v_add_f32 v8, v{a}, v{a+1}")
        for i in range(2,16): k.e(f"v_add_f32 v8, v8, v{a+i}")
        cross_half_add(k,8,9)
        k.e(f"v_mul_f32 v10, {fbits(1.0/32)}, v8")
        k.e("v_mov_b32 v9, 0")
        for i in range(16):
            k.e([f"v_sub_f32 v11, v{a+i}, v10","v_fmac_f32 v9, v11, v11"])
        cross_half_add(k,9,11)
        k.e(f"buffer_store_dwordx2 v[8:9], v5, s[8:11], s26 offen offset:0")
        if u==0: k.e([f"v_add_u32 v5, {32*144}, v5","s_nop 1"])
    k.stamp(3); k.stamp_dump()
    k.label(END); k.e("s_endpgm")
    return k,192,192,73728
```

```python
from asmlib import *
from layout import *
from gemm import *
from k0 import fbits, ws_srd
HO=73728; XO=147456
BX=4; BH=8; HW=12; HH=14; XW=15; XR=16; NM=17; C1=19; RS=21; CSA=23; CS=24; TMP=40; PK=48; RING=56; AX=128; AY=160; BT=192; XT=224
LOG2E=1.4426950408889634
def gen_k45(layer):
    k=Kern(f"k45_mlp{layer}_kernel", nvgpr=256, nagpr=256, nsgpr=64)
    B=LB(layer); END=k.name+"_end"
    k.e([f"s_cmp_ge_u32 s2, 256", f"s_cbranch_scc1 {END}",
         "s_load_dwordx2 s[4:5], s[0:1], 64"]); k.stamp(0)
    k.e(["v_lshrrev_b32 v1, 6, v0","v_and_b32 v0, 63, v0","s_nop 0","v_readfirstlane_b32 s3, v1",
         "v_lshlrev_b32 v1, 4, v0","v_and_b32 v2, 31, v0","v_lshrrev_b32 v3, 5, v0",
         "s_lshr_b32 s12, s2, 3","s_and_b32 s13, s2, 7","s_and_b32 s14, s3, 1","s_lshr_b32 s15, s3, 1",
         "s_waitcnt lgkmcnt(0)"])
    ws_srd(k,8,(4,5))
    st=Stream(k,RING,18,324,btail=BT)
    ST=(128,164)
    k.e(["s_lshl_b32 s16, s12, 1","v_mul_u32_u24 v40, 144, v2"])
    for u in range(2):
        k.e([f"s_xor_b32 s17, s14, {u}","s_add_u32 s17, s17, s16",f"s_mul_i32 s17, s17, {32*144}",f"s_add_u32 s17, s17, {B+L_ST}"])
        for j in range(9):
            k.vm_op(f"buffer_load_dwordx4 v[{ST[u]+4*j}:{ST[u]+4*j+3}], v40, s[8:11], s17 offen offset:{16*j}","ST")
    k.e([f"s_mul_i32 s18, s12, {2*AFB}",f"s_add_u32 s18, s18, {B+L_X1}","s_lshl_b32 s19, s3, 10","s_add_u32 s18, s18, s19"])
    for i in range(18):
        k.e([f"s_add_u32 m0, s19, {i*4096}", f"s_add_u32 s21, s18, {i*4096}"])
        k.vm_op("buffer_load_dwordx4 v1, s[8:11], s21 offen lds","X")
    k.e(["s_lshl_b32 s20, s13, 2","s_add_u32 s20, s20, s3",f"s_mul_i32 s20, s20, {W12_WAVE}",f"s_add_u32 s20, s20, {WS_W12}"])
    st.prefetch(6)
    k.e([f"s_mul_i32 s22, s13, {18*128}",f"s_add_u32 s22, s22, {WS_CS1}",f"v_lshlrev_b32 v{CSA}, 6, v3"])
    def cs_load(jexpr_s):
        return [("vm",f"buffer_load_dwordx4 v[{CS+4*g}:{CS+4*g+3}], v{CSA}, s[8:11], {jexpr_s} offen offset:{16*g}","CS") for g in range(4)]
    k.e(["s_add_u32 s23, s15, 16","s_lshl_b32 s23, s23, 7","s_add_u32 s23, s23, s22",
         "s_lshl_b32 s24, s3, 7","s_add_u32 s24, s24, s22"])
    for it in cs_load("s23"): st.place(it)
    for u in range(2):
        k.e([f"s_xor_b32 s17, s14, {u}",f"s_mul_i32 s17, s17, {AFB}"])
        for kp in range(2):
            k.e([f"s_xor_b32 s21, s14, {kp}","s_lshl_b32 s21, s21, 10","s_add_u32 s21, s21, s17",f"v_add_u32 v{BX+2*u+kp}, s21, v1",f"v_add_u32 v{BH+2*u+kp}, {HO}, v{BX+2*u+kp}"])
        k.e(["s_lshl_b32 s21, s3, 11","s_add_u32 s21, s21, s17",f"s_add_u32 s21, s21, {HO}",f"v_add_u32 v{HW+u}, s21, v1"])
    k.e([f"s_mul_i32 s17, s14, {AFB}","s_lshl_b32 s21, s15, 11","s_add_u32 s21, s21, s17",f"s_add_u32 s21, s21, {HO+32*1024}",f"v_add_u32 v{HH}, s21, v1",
         "s_lshl_b32 s21, s3, 12",f"s_add_u32 s21, s21, {XO}",f"v_add_u32 v{XW}, s21, v1",
         "s_xor_b32 s21, s3, 1","s_lshl_b32 s21, s21, 12",f"s_add_u32 s21, s21, {XO}",f"v_add_u32 v{XR}, s21, v1"])
    for u in range(2):
        k.e([f"s_xor_b32 s17, s14, {u}","s_add_u32 s17, s17, s16",f"s_mul_i32 s17, s17, {AFB}",f"s_mul_i32 s21, s13, {AF_SIZE}","s_add_u32 s17, s17, s21",f"s_add_u32 s{26+u}, s17, {B+L_PART}"])
    k.e(["s_lshl_b32 s21, s3, 11","s_add_u32 s28, s26, s21","s_add_u32 s29, s27, s21",
         "s_lshl_b32 s21, s15, 11","s_add_u32 s30, s26, s21",f"s_add_u32 s30, s30, {32*1024}"])
    k.vm_wait("ST")
    for u in range(2):
        T=ST[u]
        k.e(f"v_add_f32 v40, v{T}, v{T+2}")
        for b in range(2,18): k.e(f"v_add_f32 v40, v40, v{T+2*b}")
        k.e(f"v_mul_f32 v40, {fbits(1.0/576)}, v40")
        k.e(["v_mov_b32 v41, 0",f"v_add_f32 v42, v{T+1}, v{T+3}"])
        for b in range(2,18): k.e(f"v_add_f32 v42, v42, v{T+2*b+1}")
        for b in range(18):
            k.e([f"v_fma_f32 v43, v{T+2*b}, s31, -v40" if False else f"v_mul_f32 v43, {fbits(1.0/32)}, v{T+2*b}","v_sub_f32 v43, v43, v40","v_fmac_f32 v41, v43, v43"])
        k.e([f"v_fmac_f32 v42, {fbits(32.0)}, v41",f"v_mov_b32 v43, {fbits(1e-5)}",f"v_fmac_f32 v43, {fbits(1.0/576)}, v42",f"v_rsq_f32 v{RS+u}, v43",
             f"v_sub_f32 v{NM+u}, 0, v40","s_nop 0",f"v_mul_f32 v{C1+u}, {fbits(-LOG2E)}, v{RS+u}"])
    k.stamp(1)
    k.vm_wait("X"); k.e("s_barrier"); k.stamp(2)
    st.prefetch(12)
    def bjX(u,kap): return f"ds_read_b128 {st.breg(u,kap)}, v{BX+2*u+(kap&1)} offset:{(kap&~1)*1024}"
    def bjH(u,kap): return f"ds_read_b128 {st.breg(u,kap)}, v{BH+2*u+(kap&1)} offset:{(kap&~1)*1024}"
    def silu(a,u,waddr,woff):
        f=[]
        for g in range(4):
            t=TMP+4*(g&1); R=range(4*g,4*g+4)
            f+=[f"v_fmac_f32 v{a+i}, v{CS+i}, v{NM+u}" for i in R]
            f+=[f"v_mul_f32 v{t+(i&3)}, v{a+i}, v{C1+u}" for i in R]
            f+=[f"v_exp_f32 v{t+(i&3)}, v{t+(i&3)}" for i in R]
            f+=[f"v_add_f32 v{t+(i&3)}, 1.0, v{t+(i&3)}" for i in R]
            f+=[f"v_rcp_f32 v{t+(i&3)}, v{t+(i&3)}" for i in R]
            f+=[f"v_mul_f32 v{a+i}, v{a+i}, v{t+(i&3)}" for i in R]
            f+=[f"v_cvt_pk_bf16_f32 v{PK+2*g}, v{a+4*g}, v{a+4*g+1}",f"v_cvt_pk_bf16_f32 v{PK+2*g+1}, v{a+4*g+2}, v{a+4*g+3}"]
            if g&1:
                s=g>>1
                f.append(("lg",f"ds_write_b128 v{waddr}, v[{PK+4*s}:{PK+4*s+3}] offset:{woff+s*1024}","HW"))
        return f
    def xch(a):
        f=[("lg",f"ds_write_b128 v{XW}, v[{a+16+4*g}:{a+16+4*g+3}] offset:{g*1024}","XW") for g in range(4)]
        f+=[("lgwait","XW"),"s_barrier"]
        f+=[("lg",f"ds_read_b128 v[{XT+4*g}:{XT+4*g+3}], v{XR} offset:{g*1024}","XRD") for g in range(4)]
        f+=[("lgwait","XRD")]
        f+=[f"v_add_f32 v{a+i}, v{a+i}, v{XT+i}" for i in range(16)]
        return f
    def outst(a,u,sbase,add):
        f=[f"v_mul_f32 v{a+i}, v{a+i}, v{RS+u}" for i in range(16)]
        f+=[f"v_cvt_pk_bf16_f32 v{PK+j}, v{a+2*j}, v{a+2*j+1}" for j in range(8)]
        f+=[f"s_add_u32 s31, {sbase}, {add}"]
        f+=[("vm",f"buffer_store_dwordx4 v[{PK}:{PK+3}], v1, s[8:11], s31 offen",None),("vm",f"buffer_store_dwordx4 v[{PK+4}:{PK+7}], v1, s[8:11], s31 offen offset:1024",None),"s_nop 0"]
        return f
    full=list(range(36)); half=list(range(0,36,2)); ord0=list(range(24))+list(range(32,36))+list(range(24,32))
    LA=3
    def csnext(rnd): return [f"s_add_u32 s25, s24, {rnd*512}"]+cs_load("s25")
    st.tile((AX,AX+16),half,bjit=bjX,la=LA); k.stamp(3)
    f=xch(AX)+[("vmwait","CS")]+silu(AX,0,HH,0)+csnext(0)
    st.tile((AY,AY+16),full,fillers=f,bjit=lambda u,kp: bjX(u,kp) if kp&1 else None,la=LA,fill_start=5); k.stamp(4)
    accs=[AX,AY]
    for rnd in range(1,4):
        prev=accs[rnd&1]; cur=accs[(rnd+1)&1]
        prev=AY if (rnd-1)%2==0 else AX
        cur=AX if (rnd-1)%2==0 else AY
        f=[("vmwait","CS")]+silu(prev,0,HW,(rnd-1)*8192)+silu(prev+16,1,HW+1,(rnd-1)*8192)+csnext(rnd)
        if rnd==3:
            f+=[("lgwait","HW"),"s_barrier"]
            for s in range(LA):
                for u in range(2): f.append(("lg",bjH(u,ord0[s]),("B",u,ord0[s])))
        st.tile((cur,cur+16),full,fillers=f,fill_start=5); k.stamp(4+rnd)
    f=[("vmwait","CS")]+silu(AX,0,HW,3*8192)+silu(AX+16,1,HW+1,3*8192)+[("lgwait","HW"),"s_barrier"]
    st.tile((AY,AY+16),ord0,fillers=f,bjit=bjH,la=LA,bpre=LA,flush_at=28,fill_start=5); k.stamp(8)
    f=outst(AY,0,"s28",0)+outst(AY+16,1,"s29",0)
    st.tile((AX,AX+16),half,fillers=f,fill_start=5)
    f=xch(AX)+outst(AX,0,"s30",0)
    st.tile((AY,AY+16),full,fillers=f,fill_start=5); k.stamp(9)
    f=outst(AY,0,"s28",8192)+outst(AY+16,1,"s29",8192)
    st.tile((AX,AX+16),full,fillers=f,fill_start=5)
    f=outst(AX,0,"s28",2*8192)+outst(AX+16,1,"s29",2*8192)
    st.tile((AY,AY+16),full,fillers=f,fill_start=5)
    k.e("s_nop 10")
    for it in outst(AY,0,"s28",3*8192)+outst(AY+16,1,"s29",3*8192): st.place(it)
    k.stamp(10); k.stamp_dump()
    k.label(END); k.e("s_endpgm")
    return k,256,256,163840
```

```python
from asmlib import *
from layout import *
from k0 import fbits, ws_srd, srd
def gen_k6(layer):
    k=Kern(f"k6_red{layer}_kernel", nvgpr=64, nsgpr=64)
    B=LB(layer); END=k.name+"_end"
    k.e([f"s_cmp_ge_u32 s2, 256", f"s_cbranch_scc1 {END}",
         "s_load_dwordx2 s[4:5], s[0:1], 64","s_load_dwordx2 s[6:7], s[0:1], 48"]); k.stamp(0)
    k.e(["v_lshrrev_b32 v1, 6, v0","v_and_b32 v2, 63, v0","s_nop 0","v_readfirstlane_b32 s3, v1",
         "v_and_b32 v3, 7, v2",
         "v_lshrrev_b32 v4, 3, v0",
         "v_lshrrev_b32 v5, 1, v4","v_and_b32 v6, 1, v4",
         "s_lshr_b32 s12, s2, 2","s_and_b32 s13, s2, 3",
         "v_lshlrev_b32 v7, 10, v5","v_lshlrev_b32 v8, 5, v6","s_lshl_b32 s14, s13, 3","v_add_u32 v8, s14, v8","v_add_u32 v8, v8, v3","v_lshlrev_b32 v8, 4, v8","v_add_u32 v7, v7, v8",
         f"s_mul_i32 s15, s12, {AFB}",
         "s_waitcnt lgkmcnt(0)"])
    ws_srd(k,8,(4,5))
    k.e(f"s_add_u32 s16, s15, {B+L_X1}")
    k.e("buffer_load_dwordx4 v[12:15], v7, s[8:11], s16 offen")
    for s in range(8):
        k.e([f"s_add_u32 s16, s15, {B+L_PART+s*AF_SIZE}", f"buffer_load_dwordx4 v[{16+4*s}:{19+4*s}], v7, s[8:11], s16 offen"])
    A=48
    k.e("s_waitcnt vmcnt(8)")
    for j in range(4): k.e([f"v_lshlrev_b32 v{A+2*j}, 16, v{12+j}", f"v_and_b32 v{A+2*j+1}, 0xffff0000, v{12+j}"])
    for s in range(8):
        k.e(f"s_waitcnt vmcnt({7-s})")
        for j in range(4):
            k.e([f"v_lshlrev_b32 v9, 16, v{16+4*s+j}", f"v_and_b32 v10, 0xffff0000, v{16+4*s+j}", f"v_add_f32 v{A+2*j}, v{A+2*j}, v9", f"v_add_f32 v{A+2*j+1}, v{A+2*j+1}, v10"])
    for j in range(4): k.e(f"v_cvt_pk_bf16_f32 v{56+j}, v{A+2*j}, v{A+2*j+1}")
    if layer==1:
        srd(k,20,(6,7),S*D*2)
        k.e(["s_lshl_b32 s16, s12, 5","s_add_u32 s16, s16, s14","v_add_u32 v9, s16, v3","v_mul_u32_u24 v9, 1152, v9","v_lshlrev_b32 v10, 5, v5","v_add_u32 v9, v9, v10","v_lshlrev_b32 v10, 3, v6","v_add_u32 v9, v9, v10",
             "buffer_store_dwordx2 v[56:57], v9, s[20:23], 0 offen","buffer_store_dwordx2 v[58:59], v9, s[20:23], 0 offen offset:16"])
    else:
        k.e([f"s_add_u32 s16, s15, {B+L_X2}","buffer_store_dwordx4 v[56:59], v7, s[8:11], s16 offen"])
        for j in range(4): k.e([f"v_lshlrev_b32 v{A+2*j}, 16, v{56+j}", f"v_and_b32 v{A+2*j+1}, 0xffff0000, v{56+j}"])
        def reduce72(v,ldsoff):
            k.e(["s_nop 1",f"v_add_f32_dpp v{v}, v{v}, v{v} row_ror:8 row_mask:0xf bank_mask:0xf","s_nop 1",
                 f"v_mov_b32 v11, v{v}","s_nop 1",f"v_permlane16_swap_b32 v{v}, v11","s_nop 1",f"v_add_f32 v{v}, v{v}, v11",
                 f"v_mov_b32 v11, v{v}","s_nop 1",f"v_permlane32_swap_b32 v{v}, v11","s_nop 1",f"v_add_f32 v{v}, v{v}, v11",
                 "s_lshl_b32 s17, s3, 5","v_lshlrev_b32 v11, 2, v3","v_add_u32 v9, s17, v11",f"ds_write_b32 v9, v{v} offset:{ldsoff}","s_waitcnt lgkmcnt(0)","s_barrier"])
            for w in range(9): k.e(f"ds_read_b32 v{20+w}, v11 offset:{ldsoff+32*w}")
            k.e("s_waitcnt lgkmcnt(0)")
            k.e(f"v_add_f32 v{v}, v20, v21")
            for w in range(2,9): k.e(f"v_add_f32 v{v}, v{v}, v{20+w}")
        k.e(f"v_add_f32 v30, v{A}, v{A+1}")
        for i in range(2,8): k.e(f"v_add_f32 v30, v30, v{A+i}")
        reduce72(30,0)
        k.e(f"v_mul_f32 v30, {fbits(1.0/576)}, v30")
        for i in range(8): k.e(f"v_sub_f32 v{A+i}, v{A+i}, v30")
        k.e(f"v_mul_f32 v31, v{A}, v{A}")
        for i in range(1,8): k.e(f"v_fmac_f32 v31, v{A+i}, v{A+i}")
        reduce72(31,512)
        k.e([f"v_mov_b32 v32, {fbits(1e-5)}", f"v_fmac_f32 v32, {fbits(1.0/576)}, v31","v_rsq_f32 v32, v32","s_nop 0"])
        for i in range(8): k.e(f"v_mul_f32 v{A+i}, v{A+i}, v32")
        for j in range(4): k.e(f"v_cvt_pk_bf16_f32 v{60+j}, v{A+2*j}, v{A+2*j+1}")
        k.e([f"s_add_u32 s16, s15, {B+L_XN2}","buffer_store_dwordx4 v[60:63], v7, s[8:11], s16 offen"])
    k.stamp(1); k.stamp_dump()
    k.label(END); k.e("s_endpgm")
    return k,256,576,1024
```

```python
S=2048; D=576; H=32; DH=18; F=4608
AFB=36864
AF_SIZE=64*AFB
WS_SIZE=0x10000000
W12_WAVE=324*1024
WS_W12=0x0000000
WS_WQKV=0x0B00000
WQKV_WAVE=72*1024
WS_WO=0x0E00000
WS_CS1=0x0F00000
WS_X0=0x1000000
WS_XN0=0x1300000
LAYER0=0x2000000
LSTRIDE=0x4000000
KVREC=2432
KV_HEAD=64*KVREC
L_Q1=0x0000000
L_Q2=0x0200000
L_KV=0x0300000
L_O=0x0800000
L_X1=0x0B00000
L_ST=0x0E00000
L_PART=0x1000000
L_X2=0x2400000
L_XN2=0x2700000
def LB(layer): return LAYER0+layer*LSTRIDE
QSCALE=(DH**-0.5)*1.4426950408889634
def pi(hh,jj): return (jj&3)+8*(jj>>2)+4*hh
```

```python
import sys, importlib
from asmlib import *
from layout import *
import k0
HEADER=open('interleave_layers__mha_block__dense_activation_silu__prompt.s.ref').read().split('\n')
hdr=[l for l in HEADER if l.startswith(';') and '@launch' not in l and 'Override' not in l and 'grid=ceil' not in l]
hdr=hdr[:10]
import os
if os.environ.get('STAMPS'): Kern.STAMPS=True
def main(out, upto=99):
    kerns=[]; launches=[]
    def add(t, names=None):
        k,n,b,l=t
        if k not in kerns: kerns.append(k)
        launches.append((k.name,n,b,l))
    K0=k0.gen_k0(); add(K0)
    mods={}
    try:
        import k1,k2,k3,k45,k6
        have=True
    except ImportError as e:
        have=False; print("partial:",e)
    for layer in range(2):
        for mn,fn in (("k1","gen_k1"),("k2","gen_k2"),("k3","gen_k3"),("k45","gen_k45"),("k6","gen_k6")):
            try: m=importlib.import_module(mn)
            except ImportError: continue
            add(getattr(m,fn)(layer))
    bad=0
    for k in kerns:
        p=check_hazards(k.l,k.name)
        for x in p[:30]: print("HAZARD",x)
        bad+=len(p)
    txt=build_file(kerns,launches,hdr)
    open(out,"w").write(txt)
    print("wrote",out,len(txt),"bytes; hazards:",bad, "launches:",[(l[0],l[1],l[2],l[3]) for l in launches])
if __name__=="__main__":
    main(sys.argv[1] if len(sys.argv)>1 else "interleave_layers__mha_block__dense_activation_silu__prompt.s")
```

```python
import re

class Kern:
    def __init__(self, name, nvgpr=256, nagpr=0, nsgpr=100):
        self.name=name; self.l=[]; self.vm=[]; self.lg=[]
        self.nvgpr=nvgpr; self.nagpr=nagpr; self.nsgpr=nsgpr
        self.tail=[]
        self._lab=0
    def e(self, s):
        if isinstance(s,(list,tuple)):
            for x in s: self.e(x)
        else:
            self.l.append(s)
    def c(self, s): self.l.append("; "+s)
    def label(self, s): self.l.append(s+":")
    def newlabel(self, base):
        self._lab+=1; return f"{self.name}_{base}_{self._lab}"
    STAMPS=False
    def stamp(self,i):
        if Kern.STAMPS:
            if i==0: self.e("s_memrealtime s[90:91]")
            self.e(f"s_memtime s[{64+2*i}:{65+2*i}]"); self.nstamp=max(getattr(self,'nstamp',0),i+1)
    def stamp_dump(self, wg=0):
        if not Kern.STAMPS: return
        self.nsgpr=100
        L=self.newlabel("nodump")
        self.e(["s_memrealtime s[92:93]","s_waitcnt lgkmcnt(0)",f"s_cmp_lg_u32 s2, {wg}",f"s_cbranch_scc1 {L}",
                "s_load_dwordx2 s[6:7], s[0:1], 56","s_waitcnt lgkmcnt(0)","s_mul_i32 s60, s3, 48","v_mov_b32 v2, s60"])
        for i in range(self.nstamp):
            self.e([f"s_sub_u32 s60, s{64+2*i}, s64",f"v_mov_b32 v3, s60",f"global_store_dword v2, v3, s[6:7] offset:{4*i}"])
        self.e(["s_sub_u32 s60, s92, s90","v_mov_b32 v3, s60","global_store_dword v2, v3, s[6:7] offset:44"])
        self.label(L)
        L2=self.newlabel("nox")
        self.e(["s_cmp_ge_u32 s2, 16",f"s_cbranch_scc1 {L2}","s_load_dwordx2 s[6:7], s[0:1], 56","s_getreg_b32 s60, hwreg(HW_REG_XCC_ID)","s_and_b32 s60, s60, 15","s_add_u32 s60, s60, 100","s_lshl_b32 s61, s2, 2","s_waitcnt lgkmcnt(0)",
                "v_mov_b32 v2, s61","v_mov_b32 v3, s60","global_store_dword v2, v3, s[6:7] offset:432"])
        self.label(L2)
    def vm_op(self, s, tag=None):
        self.e(s); self.vm.append(tag)
    def vm_need(self, tag):
        idx=[i for i,t in enumerate(self.vm) if t==tag]
        if not idx: return None
        return len(self.vm)-1-idx[-1]
    def vm_wait(self, tag):
        n=self.vm_need(tag)
        if n is None: return False
        assert n<=63, ("vmcnt too large", n, tag)
        self.e(f"s_waitcnt vmcnt({n})")
        self.vm=self.vm[len(self.vm)-n:] if n>0 else []
        return True
    def vm_wait_all(self):
        self.e("s_waitcnt vmcnt(0)"); self.vm=[]
    def lg_op(self, s, tag=None):
        self.e(s); self.lg.append(tag)
    def lg_need(self, tag):
        idx=[i for i,t in enumerate(self.lg) if t==tag]
        if not idx: return None
        return len(self.lg)-1-idx[-1]
    def lg_wait(self, tag):
        n=self.lg_need(tag)
        if n is None: return False
        if n>15: n=15
        self.e(f"s_waitcnt lgkmcnt({n})")
        self.lg=self.lg[len(self.lg)-n:] if n>0 else []
        return True
    def lg_wait_all(self):
        self.e("s_waitcnt lgkmcnt(0)"); self.lg=[]
    aliases=None
    def entries(self): return [a[0] for a in self.aliases] if self.aliases else [self.name]
    def code_prefetch(self, start, end, nw, vtmp, stmp=(50,51,52), wave="s3", tag=None):
        L=self.newlabel("pc"); a,b,c=stmp
        self.e([f"s_getpc_b64 s[{a}:{a+1}]"]); self.label(L)
        self.e([f"s_add_u32 s{a}, s{a}, {start}-{L}", f"s_addc_u32 s{a+1}, s{a+1}, ({start}-{L})>>32",
                f"s_lshr_b32 s{c}, s2, 3", f"s_and_b32 s{c}, s{c}, 31", f"s_mul_i32 s{c}, s{c}, {nw}", f"s_add_u32 s{c}, s{c}, {wave}", f"s_lshl_b32 s{c}, s{c}, 10",
                f"s_min_u32 s{c}, s{c}, {end}-{start}-1024",
                f"v_lshlrev_b32 v{vtmp}, 4, v0", f"v_add_u32 v{vtmp}, s{c}, v{vtmp}"])
        self.vm_op(f"global_load_dwordx4 v[{vtmp+2}:{vtmp+5}], v{vtmp}, s[{a}:{a+1}]", tag)
    def text(self):
        o=[]
        if self.aliases:
            for nm,setup in self.aliases:
                o+=[f".globl {nm}",".p2align 8",f".type {nm},@function",f"{nm}:"]+["  "+x for x in setup]+[f"  s_branch {self.name}_body"]
            o+=[".p2align 6",f"{self.name}_body:"]
        else:
            o=[f".globl {self.name}",".p2align 8",f".type {self.name},@function",f"{self.name}:"]
        for x in self.l:
            if x.endswith(":") or x.startswith(";") or x.startswith("."): o.append(x)
            else: o.append("  "+x)
        o+=self.tail
        o.append(f"{self.name}_codeend:")
        return "\n".join(o)
    def desc(self):
        tot=self.nvgpr+self.nagpr
        acc=(self.nvgpr+3)//4*4
        if self.nagpr: tot=acc+self.nagpr
        out=[]
        for nm in self.entries():
            out+=[".p2align 6",f".amdhsa_kernel {nm}",
            f"  .amdhsa_next_free_vgpr {tot}",f"  .amdhsa_next_free_sgpr {self.nsgpr}",f"  .amdhsa_accum_offset {acc}",
            "  .amdhsa_group_segment_fixed_size 0","  .amdhsa_kernarg_size 72","  .amdhsa_user_sgpr_count 2",
            "  .amdhsa_user_sgpr_kernarg_segment_ptr 1","  .amdhsa_system_sgpr_workgroup_id_x 1",
            "  .amdhsa_float_denorm_mode_32 3",".end_amdhsa_kernel"]
        return "\n".join(out)

_reg_re=re.compile(r'^(-?)(\|?)(abs\()?([vas])(\d+|\[(\d+):(\d+)\])')
def regs_of(op):
    op=op.strip()
    if op in("vcc","exec","m0","scc"): return [("s",op)]
    if op in ("vcc_lo","vcc_hi"): return [("s","vcc")]
    m=_reg_re.match(op)
    if not m: return []
    k=m.group(4)
    if m.group(6) is not None:
        return [(k,i) for i in range(int(m.group(6)),int(m.group(7))+1)]
    return [(k,int(m.group(5)))]
TRANS=("v_exp_","v_log_","v_rcp_","v_rsq_","v_sqrt_","v_sin_","v_cos_")
def split_ops(rest):
    ops=[];d=0;cur=""
    for ch in rest:
        if ch=="[":d+=1
        if ch=="]":d-=1
        if ch=="," and d==0: ops.append(cur.strip());cur=""
        else: cur+=ch
    if cur.strip(): ops.append(cur.strip())
    out=[]
    for o in ops:
        out.append(o.split()[0] if o.split() else o)
    return out
def parse(line):
    line=line.split(";")[0].strip()
    if not line or line.endswith(":") or line.startswith("."): return None
    p=line.split(None,1); mn=p[0]; ops=split_ops(p[1]) if len(p)>1 else []
    d=dict(mn=mn,w=[],r=[],kind="other",line=line,states=1)
    R=lambda i: regs_of(ops[i]) if i<len(ops) else []
    if mn=="s_nop": d["states"]=int(ops[0],0)+1; d["kind"]="nop"; return d
    if mn.startswith("v_mfma"):
        d["kind"]="mfma"; d["w"]=R(0); d["A"]=R(1); d["B"]=R(2); d["C"]=R(3); d["r"]=d["A"]+d["B"]+d["C"]
        d["passes"]= 16 if ("_2b_" in mn or "32x32x2_f32" in mn) else (8 if "32x32" in mn else 4)
        return d
    if mn.startswith("v_"):
        d["kind"]="trans" if mn.startswith(TRANS) else "valu"
        if mn.startswith("v_cmp"):
            d["w"]=R(0); d["r"]=sum((R(i) for i in range(1,len(ops))),[])
            if mn.startswith("v_cmpx"): d["w"]=d["w"]+[("s","exec")]
        elif mn.startswith("v_readfirstlane") or mn.startswith("v_readlane"):
            d["w"]=R(0); d["r"]=sum((R(i) for i in range(1,len(ops))),[]); d["lane"]=True
        elif mn.startswith("v_permlane"):
            d["w"]=R(0)+R(1); d["r"]=R(0)+R(1); d["perm"]=True
        else:
            d["w"]=R(0); d["r"]=sum((R(i) for i in range(1,len(ops))),[])
            if mn.startswith(("v_fmac","v_dot2c","v_mac","v_pk_fmac")): d["r"]+=R(0)
            if "_co_" in mn and len(ops)>1 and ops[1] in("vcc",) : d["w"]+= [("s","vcc")]
            if mn.startswith("v_cndmask") and len(ops)==3: d["r"]+=[("s","vcc")]
            if "dpp" in mn or "row_" in line or "quad_perm" in line: d["dpp"]=True
            if "sdwa" in mn and "UNUSED_PRESERVE" in line: d["r"]+=R(0)
        return d
    if mn.startswith(("buffer_","global_")):
        d["kind"]="vmem"
        lds=" lds" in (" "+line) and mn.startswith("buffer_load") or "load_lds" in mn
        if mn.startswith("buffer_load") and not lds:
            d["w"]=R(0); d["r"]=sum((R(i) for i in range(1,len(ops))),[])
        elif mn.startswith("global_load") and not lds:
            d["w"]=R(0); d["r"]=sum((R(i) for i in range(1,len(ops))),[])
        else:
            d["r"]=sum((R(i) for i in range(0,len(ops))),[])
            if lds: d["r"]+=[("s","m0")]; d["dma"]=True
            if mn.startswith("buffer_store"): d["sdata"]=R(0); d["wide"]=("x4" in mn or "x3" in mn)
            if mn.startswith("global_store"): d["sdata"]=R(1); d["wide"]=("x4" in mn or "x3" in mn)
        return d
    if mn.startswith("ds_"):
        d["kind"]="ds"
        if mn.startswith(("ds_read","ds_bpermute","ds_permute","ds_swizzle")):
            d["w"]=R(0); d["r"]=sum((R(i) for i in range(1,len(ops))),[])
        else:
            d["r"]=sum((R(i) for i in range(0,len(ops))),[])
        return d
    if mn.startswith("s_"):
        d["kind"]="salu"
        if mn.startswith(("s_cmp","s_cbranch","s_branch","s_waitcnt","s_barrier","s_endpgm","s_setprio","s_bitcmp")):
            d["r"]=sum((R(i) for i in range(0,len(ops))),[])
        else:
            d["w"]=R(0); d["r"]=sum((R(i) for i in range(1,len(ops))),[])
            if "saveexec" in mn: d["w"]+=[("s","exec")]
        return d
    return d
def check_hazards(lines, name=""):
    ins=[p for p in (parse(l) for l in lines) if p]
    probs=[]
    for x in ins:
        m=re.search(r'offset:(\d+)',x["line"])
        if m:
            o=int(m.group(1))
            if x["mn"].startswith("buffer_") and o>4095: probs.append(f"{name}: MUBUF offset too large: {x['line']}")
            if x["mn"].startswith("global_") and o>4095: probs.append(f"{name}: global offset too large: {x['line']}")
            if x["mn"].startswith("ds_") and o>65535: probs.append(f"{name}: DS offset too large: {x['line']}")
    pos=[];t=0
    for x in ins: pos.append(t); t+=x["states"]
    lastw={}
    lastCread={}
    laststore={}
    def dist(i,j):
        return pos[j]-pos[i]-ins[i]["states"]
    for j,x in enumerate(ins):
        k=x["kind"]
        isvalu=k in("valu","trans")
        for r in x["r"]:
            if r not in lastw: continue
            i=lastw[r]; p=ins[i]; d=dist(i,j); need=0
            pk=p["kind"]
            if pk in("valu","trans"):
                if k=="mfma" and r[0] in "va": need=2
                if pk=="trans" and k in("valu",) and r[0]=="v": need=max(need,1)
                if pk=="trans" and k=="mfma": need=2
                if x.get("lane") and r[0]=="v": need=max(need,1)
                if x.get("perm") and r[0]=="v": need=max(need,2)
                if x.get("dpp") and r[0]=="v": need=max(need,2)
                if r[0]=="s" and r[1]!="exec":
                    if isvalu: need=max(need,2)
                    if k=="vmem": need=max(need,5)
                    if x.get("lane"): need=max(need,4)
                if r==("s","exec") and x.get("dpp"): need=max(need,5)
            if p["mn"].startswith("v_dot") and x["mn"]!=p["mn"] and r[0]=="v": need=max(need,3)
            if pk=="mfma":
                P=p["passes"]; big={4:8,8:12,16:20,2:5}[P]
                if k=="mfma":
                    if r in x["C"] and r not in x["A"] and r not in x["B"]:
                        same=(x["C"]==p["w"] and x["passes"]==P)
                        need=0 if same else {4:6,8:10,16:18}[P]
                    else: need=big
                elif k in("valu","trans","vmem","ds"): need=big
            if pk=="salu" and r==("s","m0") and x.get("dma"): need=1
            if d<need: probs.append(f"{name}: RAW {r} need {need} have {d}: [{p['line']}] -> [{x['line']}]")
        for r in x["w"]:
            if r in lastw:
                i=lastw[r]; p=ins[i]; d=dist(i,j)
                if p["kind"]=="mfma":
                    P=p["passes"]; big={4:8,8:12,16:20}[P]
                    if k in("valu","trans","vmem","ds") and d<big:
                        probs.append(f"{name}: WAW {r} need {big} have {d}: [{p['line']}] -> [{x['line']}]")
                    if k=="mfma" and not (r in x["C"]) and d<{4:6,8:10,16:18}[P]:
                        probs.append(f"{name}: WAW(mfma) {r} have {d}: [{p['line']}] -> [{x['line']}]")
            if r in lastCread and isvalu:
                i=lastCread[r]; P=ins[i]["passes"]; need={4:3,8:7,16:15}[P]; d=dist(i,j)
                if d<need: probs.append(f"{name}: WAR-C {r} need {need} have {d}: [{ins[i]['line']}] -> [{x['line']}]")
            if r in laststore and isvalu:
                i=laststore[r]; d=dist(i,j)
                if d<2: probs.append(f"{name}: store-data WAR {r} have {d}: [{ins[i]['line']}] -> [{x['line']}]")
        if k=="mfma":
            for r in x["C"]: lastCread[r]=j
        if x.get("wide"):
            for r in x["sdata"]: laststore[r]=j
        for r in x["w"]: lastw[r]=j
    return probs

def build_file(kerns, launches, header_comment):
    o=[]
    o+=header_comment
    for (k,grid,block,lds) in launches:
        o.append(f"; @launch kernel={k} grid=({grid},1,1) block=({block},1,1) lds={lds}")
    o.append('.amdgcn_target "amdgcn-amd-amdhsa--gfx950"')
    o.append(".text")
    for k in kerns: o.append(k.text())
    o.append('.section .rodata,"a"')
    for k in kerns: o.append(k.desc())
    return "\n".join(o)+"\n"
```

```python
from asmlib import *
TRANSP=("v_exp_","v_log_","v_rcp_","v_rsq_","v_sqrt_")
def cost(item):
    if isinstance(item,str):
        if item.startswith(TRANSP): return 8
        if item.startswith(";"): return 0
        if item.startswith("s_nop"): return 4*(int(item.split()[1])+1)
        return 4
    if item[0] in("vm","lg"): return 4
    if item[0] in("vmwait","lgwait"): return 4
    if item[0]=="call": return 0
    return 4
class Stream:
    def __init__(self,k,ring,R,total,srd="s[8:11]",voff="v1",soff="s20",btail=None,nt=""):
        self.k=k; self.ring=ring; self.R=R; self.total=total; self.srd=srd; self.voff=voff; self.soff=soff
        self.n=0
        self.issued=0
        self.btail=btail
        self.mod=nt
    def breg(self,u,kap):
        b=kap*2+u
        if b<64: return f"a[{4*b}:{4*b+3}]"
        r=self.btail+4*(b-64); return f"v[{r}:{r+3}]"
    def slot(self,n):
        r=self.ring+4*(n%self.R); return f"v[{r}:{r+3}]"
    def issue(self):
        n=self.issued
        if n>=self.total: return
        k=self.k
        if n%4==0 and n>0: k.e(f"s_add_u32 {self.soff}, {self.soff}, 4096")
        off=(n%4)*1024
        k.vm_op(f"buffer_load_dwordx4 {self.slot(n)}, {self.voff}, {self.srd}, {self.soff} offen offset:{off}{self.mod}", ("A",n))
        self.issued+=1
    def prefetch(self,cnt=None):
        for _ in range(self.R if cnt is None else cnt): self.issue()
    def place(self,item):
        k=self.k
        if isinstance(item,str): k.e(item)
        elif item[0]=="vm": k.vm_op(item[1],item[2])
        elif item[0]=="lg": k.lg_op(item[1],item[2])
        elif item[0]=="vmwait": k.vm_wait(item[1])
        elif item[0]=="lgwait":
            if item[1] is None: k.lg_wait_all()
            else: k.lg_wait(item[1])
        elif item[0]=="call": item[1]()
        else: raise ValueError(item)
    def tile(self,acc,kaps,fillers=(),swap=False,cinit=(False,False),bjit=None,la=3,fill_start=4,budget=24,
             at=None,bpre=0,flush_at=None,us=(0,1),post=None,boost=0):
        k=self.k; fill=list(fillers); at=at or {}
        nsteps=len(kaps); gap=0
        def jit(s):
            if bjit is None or s>=nsteps: return
            for u in us:
                ins=bjit(u,kaps[s])
                if ins: k.lg_op(ins,("B",u,kaps[s]))
        if bjit is not None:
            for s in range(bpre,min(la,nsteps)): jit(s)
        def dofill(b):
            while fill and b>0:
                c=cost(fill[0])
                if c>b+2 and b<budget-6: break
                self.place(fill.pop(0)); b-=c
        for s,kap in enumerate(kaps):
            n=self.n
            if s in at:
                for it in at[s]: self.place(it)
            if k.vm_need(("A",n)) is not None:
                tgt=("A",n+1) if (n+1<self.issued and s+1<nsteps and k.vm_need(("A",n+1)) is not None and k.vm_need(("A",n+1))>=12) else ("A",n)
                k.vm_wait(tgt)
            if bjit is not None:
                for u in reversed(us):
                    if k.lg_need(("B",u,kap)) is not None: k.lg_wait(("B",u,kap)); break
            for u in us:
                a=acc[u]; C=f"v[{a}:{a+15}]" if (s>0 or cinit[u]) else "0"
                A=self.slot(n); B=self.breg(u,kap)
                if swap: A,B=B,A
                k.e(f"v_mfma_f32_32x32x16_bf16 v[{a}:{a+15}], {A}, {B}, {C}")
                b=budget
                if u==us[-1]:
                    pre=len(k.l)
                    self.n+=1
                    if self.issued-self.n<self.R: self.issue()
                    for _ in range(boost):
                        if self.issued-self.n<self.R: self.issue()
                    if post and s in post:
                        for it in post[s]: self.place(it)
                    if flush_at is not None and s+la==flush_at:
                        while fill: self.place(fill.pop(0))
                    if s+la>=bpre: jit(s+la)
                    b-=4*(len(k.l)-pre)
                if gap>=fill_start: dofill(b)
                gap+=1
        while fill: self.place(fill.pop(0))
```

```python
from asmlib import *
from layout import *
import struct
def fbits(x): return "0x%08x"%struct.unpack("<I",struct.pack("<f",x))[0]

def ws_srd(k, d=8, ptr=(4,5)):
    k.e([f"s_mov_b32 s{d}, s{ptr[0]}", f"s_mov_b32 s{d+1}, s{ptr[1]}", f"s_mov_b32 s{d+2}, {hex(WS_SIZE)}", f"s_mov_b32 s{d+3}, 0x20000"])
def layer_srd(k, d=44, ptr=(4,5), off="s34"):
    k.e([f"s_add_u32 s{d}, s{ptr[0]}, {off}", f"s_addc_u32 s{d+1}, s{ptr[1]}, 0", f"s_mov_b32 s{d+2}, {hex(2*LSTRIDE)}", f"s_mov_b32 s{d+3}, 0x20000"])
def layer_aliases(k, base):
    k.aliases=[(f"{base}{l}_kernel",[f"s_mov_b32 s34, {hex(l*LSTRIDE)}"]) for l in range(2)]
def srd(k, d, ptr, size):
    k.e([f"s_mov_b32 s{d}, s{ptr[0]}", f"s_mov_b32 s{d+1}, s{ptr[1]}", f"s_mov_b32 s{d+2}, {hex(size)}", f"s_mov_b32 s{d+3}, 0x20000"])

def cross_half_add(k, v, t):
    k.e([f"v_mov_b32 v{t}, v{v}", "s_nop 1", f"v_permlane32_swap_b32 v{v}, v{t}", "s_nop 1", f"v_add_f32 v{v}, v{v}, v{t}"])

def ln_tile_task(k, layer_tag):
    pass

NWG0=64+72+72+9+64
def gen_k0():
    k=Kern("k0_prep_kernel", nvgpr=128, nsgpr=64)
    END="k0_end"
    k.e([f"s_cmp_ge_u32 s2, {NWG0}", f"s_cbranch_scc1 {END}"])
    k.e(["s_load_dwordx2 s[4:5], s[0:1], 64",
         "s_load_dwordx2 s[12:13], s[0:1], 0",
         "s_load_dwordx2 s[16:17], s[0:1], 8",
         "s_load_dwordx2 s[20:21], s[0:1], 16",
         "s_load_dwordx2 s[24:25], s[0:1], 32",
         "s_load_dwordx2 s[28:29], s[0:1], 40",
         "v_lshrrev_b32 v1, 6, v0", "v_and_b32 v0, 63, v0", "s_nop 0", "v_readfirstlane_b32 s3, v1",
         ]); k.stamp(0)
    k.e("s_waitcnt lgkmcnt(0)")
    ws_srd(k,8,(4,5))
    k.e(["v_lshlrev_b32 v1, 4, v0",
         "v_and_b32 v2, 31, v0",
         "v_lshrrev_b32 v3, 5, v0",
         "v_mov_b32 v4, 0x3f803f80"])
    k.code_prefetch("k1_qkv0_kernel","k6_red_codeend",4,120)
    k.e(["s_cmp_lt_u32 s2, 64","s_cbranch_scc1 k0_x",
         "s_cmp_lt_u32 s2, 217","s_cbranch_scc1 k0_w",
         "s_branch k0_qkv"])
    k.label("k0_x")
    srd(k,36,(12,13),S*D*2)
    k.e(["s_lshl_b32 s14, s2, 5","v_add_u32 v5, s14, v2","s_movk_i32 s15, 1152","v_mul_lo_u32 v5, v5, s15","v_lshlrev_b32 v6, 3, v3","v_add_u32 v5, v5, v6",
         "s_lshl_b32 s18, s3, 5"])
    X=16
    for m in range(9):
        k.e(f"s_add_u32 s19, s18, {m*128}")
        k.e(f"buffer_load_dwordx2 v[{X+4*m}:{X+4*m+1}], v5, s[36:39], s19 offen")
        k.e(f"buffer_load_dwordx2 v[{X+4*m+2}:{X+4*m+3}], v5, s[36:39], s19 offen offset:16")
    k.e([f"s_mul_i32 s22, s2, {AFB}","s_lshl_b32 s23, s3, 10","s_add_u32 s22, s22, s23"])
    k.e(["s_waitcnt vmcnt(0)"])
    k.e(["v_mov_b32 v7, 0"])
    for m in range(9):
        k.e(f"s_add_u32 s19, s22, {WS_X0+m*4096}")
        k.e(f"buffer_store_dwordx4 v[{X+4*m}:{X+4*m+3}], v1, s[8:11], s19 offen")
        for j in range(4): k.e(f"v_dot2c_f32_bf16 v7, v{X+4*m+j}, v4")
    k.e("s_nop 2")
    cross_half_add(k,7,8)
    k.e(["v_lshlrev_b32 v9, 2, v2","s_lshl_b32 s23, s3, 7","v_add_u32 v10, s23, v9","ds_write_b32 v10, v7","s_waitcnt lgkmcnt(0)","s_barrier",
         "ds_read_b32 v11, v9","ds_read_b32 v12, v9 offset:128","ds_read_b32 v13, v9 offset:256","ds_read_b32 v14, v9 offset:384","s_waitcnt lgkmcnt(0)",
         "v_add_f32 v11, v11, v12","v_add_f32 v13, v13, v14","v_add_f32 v11, v11, v13",f"v_mul_f32 v11, {fbits(1.0/576)}, v11"])
    Y=52
    k.e("v_mov_b32 v7, 0")
    for i in range(36):
        k.e([f"v_lshlrev_b32 v{Y+2*i}, 16, v{X+i}", f"v_and_b32 v{Y+2*i+1}, 0xffff0000, v{X+i}",
             f"v_sub_f32 v{Y+2*i}, v{Y+2*i}, v11", f"v_sub_f32 v{Y+2*i+1}, v{Y+2*i+1}, v11",
             f"v_fmac_f32 v7, v{Y+2*i}, v{Y+2*i}", f"v_fmac_f32 v7, v{Y+2*i+1}, v{Y+2*i+1}"])
    cross_half_add(k,7,8)
    k.e(["ds_write_b32 v10, v7 offset:512","s_waitcnt lgkmcnt(0)","s_barrier",
         "ds_read_b32 v12, v9 offset:512","ds_read_b32 v13, v9 offset:640","ds_read_b32 v14, v9 offset:768","ds_read_b32 v15, v9 offset:896","s_waitcnt lgkmcnt(0)",
         "v_add_f32 v12, v12, v13","v_add_f32 v14, v14, v15","v_add_f32 v12, v12, v14",
         f"v_mov_b32 v13, {fbits(1e-5)}", f"v_fmac_f32 v13, {fbits(1.0/576)}, v12","v_rsq_f32 v13, v13","s_nop 1"])
    for i in range(36):
        k.e([f"v_mul_f32 v{Y+2*i}, v{Y+2*i}, v13", f"v_mul_f32 v{Y+2*i+1}, v{Y+2*i+1}, v13", f"v_cvt_pk_bf16_f32 v{X+i}, v{Y+2*i}, v{Y+2*i+1}"])
    for m in range(9):
        k.e(f"s_add_u32 s19, s22, {WS_XN0+m*4096}")
        k.e(f"buffer_store_dwordx4 v[{X+4*m}:{X+4*m+3}], v1, s[8:11], s19 offen")
    k.e(f"s_branch {END}")
    k.label("k0_w")
    k.e(["v_lshrrev_b32 v5, 3, v0","v_and_b32 v6, 7, v0","v_lshlrev_b32 v6, 4, v6",
         "s_mul_i32 s30, s3, 18432",
         "v_lshrrev_b32 v8, 2, v0","v_and_b32 v8, 3, v8",
         "v_lshlrev_b32 v9, 2, v3","v_add_u32 v8, v8, v9","v_lshlrev_b32 v8, 7, v8",
         "v_lshrrev_b32 v9, 4, v0","v_and_b32 v9, 1, v9","v_lshlrev_b32 v9, 5, v9","v_add_u32 v8, v8, v9",
         "v_and_b32 v9, 3, v0","v_lshlrev_b32 v9, 3, v9","v_add_u32 v8, v8, v9","v_add_u32 v7, s30, v8"])
    k.e(["s_cmp_lt_u32 s2, 136","s_cbranch_scc1 k0_w1","s_cmp_lt_u32 s2, 208","s_cbranch_scc1 k0_w2","s_branch k0_wo"])
    def process_units(k, dst_calc, colsum=False):
        k.e("s_waitcnt vmcnt(0)")
        if colsum: k.e(["v_mov_b32 v12, 0","v_mov_b32 v13, 0"])
        for m in range(9):
            for f in range(2):
                b=16+8*(m%2)*2+f*8
                b=16+((2*m+f)%8)*4
                k.e(f"ds_read_b64_tr_b16 v[{b}:{b+1}], v7 offset:{m*2048+f*64}")
                k.e(f"ds_read_b64_tr_b16 v[{b+2}:{b+3}], v7 offset:{m*2048+f*64+1024}")
                dst_calc(m,f)
                k.e("s_waitcnt lgkmcnt(0)")
                k.e(f"buffer_store_dwordx4 v[{b}:{b+3}], v1, s[8:11], s19 offen")
                if colsum:
                    for j in range(4): k.e(f"v_dot2c_f32_bf16 v{12+f}, v{b+j}, v4")
    k.label("k0_w1")
    srd(k,36,(24,25),D*F*2)
    k.e(["s_sub_u32 s14, s2, 64",
         "s_movk_i32 s15, 9216","v_mul_lo_u32 v10, v5, s15","v_add_u32 v10, v10, v6",
         "s_lshl_b32 s18, s14, 7","s_mul_i32 s19, s3, %d"%(16*9216),"s_add_u32 s18, s18, s19"])
    for m in range(9):
        for q in range(2):
            k.e([f"s_add_u32 s19, s18, {m*64*9216+q*8*9216}", f"s_add_u32 m0, s30, {m*2048+q*1024}", "s_nop 0",
                 "buffer_load_dwordx4 v10, s[36:39], s19 offen lds"])
    k.e(["s_mul_i32 s22, s14, 57","s_lshr_b32 s22, s22, 9",
         "s_mul_i32 s23, s22, 9","s_sub_u32 s23, s14, s23",
         f"s_mul_i32 s26, s22, {4*W12_WAVE}"])
    assert all((cb*57>>9)==cb//9 for cb in range(72))
    k.e(["s_and_b32 s27, s23, 1","s_lshl_b32 s27, s27, 1",f"s_mul_i32 s27, s27, {W12_WAVE}",
         "s_lshr_b32 s31, s23, 1","s_mul_i32 s31, s31, 36","s_add_u32 s31, s31, 18","s_lshl_b32 s31, s31, 10",
         "s_add_u32 s27, s27, s31","s_add_u32 s27, s27, s26"])
    def dst_w1(m,f):
        k.e([f"s_add_u32 s32, s3, {4*m}"])
        k.e([f"s_xor_b32 s33, s32, {f}","s_lshl_b32 s33, s33, 10","s_add_u32 s33, s33, s27"])
        if f: k.e(f"s_add_u32 s33, s33, {W12_WAVE}")
        k.e(["s_and_b32 s34, s32, 1",f"s_add_u32 s34, s34, {2*f}",f"s_mul_i32 s34, s34, {W12_WAVE}","s_lshr_b32 s35, s32, 1","s_lshl_b32 s35, s35, 10",
             "s_add_u32 s34, s34, s35","s_add_u32 s34, s34, s26",
             "s_cmp_eq_u32 s23, 8","s_cselect_b32 s19, s34, s33",f"s_add_u32 s19, s19, {WS_W12}"])
    process_units(k,dst_w1,colsum=True)
    k.e("s_nop 2")
    cross_half_add(k,12,14); cross_half_add(k,13,14)
    k.e(["v_cmp_gt_u32 vcc, 32, v0","s_nop 1","v_cndmask_b32 v12, v13, v12, vcc",
         "v_lshlrev_b32 v14, 2, v0","v_add_u32 v15, s30, v14","ds_write_b32 v15, v12","s_waitcnt lgkmcnt(0)","s_barrier",
         "s_cmp_lg_u32 s3, 0",f"s_cbranch_scc1 {END}",
         "ds_read_b32 v16, v14","ds_read_b32 v17, v14 offset:18432","ds_read_b32 v18, v14 offset:36864","ds_read_b32 v19, v14 offset:55296","s_waitcnt lgkmcnt(0)",
         "v_add_f32 v16, v16, v17","v_add_f32 v18, v18, v19","v_add_f32 v16, v16, v18",
         "v_lshlrev_b32 v20, 7, v3","v_lshrrev_b32 v21, 2, v2","v_and_b32 v21, 1, v21","v_lshlrev_b32 v21, 6, v21","v_add_u32 v20, v20, v21",
         "v_and_b32 v21, 3, v2","v_lshrrev_b32 v22, 3, v2","v_lshlrev_b32 v22, 2, v22","v_add_u32 v21, v21, v22","v_lshlrev_b32 v21, 2, v21","v_add_u32 v20, v20, v21",
         "s_lshl_b32 s19, s14, 8",f"s_add_u32 s19, s19, {WS_CS1}","buffer_store_dword v16, v20, s[8:11], s19 offen",
         f"s_branch {END}"])
    k.label("k0_w2")
    srd(k,36,(28,29),F*D*2)
    k.e(["s_sub_u32 s14, s2, 136","s_lshl_b32 s14, s14, 2","s_add_u32 s14, s14, s3",
         "s_movk_i32 s15, 1152","v_mul_lo_u32 v10, v5, s15","v_add_u32 v10, v10, v6",
         "s_mul_i32 s18, s14, %d"%(16*1152)])
    for m in range(9):
        for q in range(2):
            k.e([f"s_add_u32 s19, s18, {m*128+q*8*1152}", f"s_add_u32 m0, s30, {m*2048+q*1024}", "s_nop 0",
                 "buffer_load_dwordx4 v10, s[36:39], s19 offen lds"])
    assert all((x*911>>15)==x//36 for x in range(288))
    k.e(["s_mul_i32 s22, s14, 911","s_lshr_b32 s22, s22, 15","s_mul_i32 s23, s22, 36","s_sub_u32 s23, s14, s23",
         f"s_mul_i32 s26, s22, {4*W12_WAVE}",f"s_add_u32 s26, s26, {WS_W12}"])
    def dst_w2(m,f):
        nb=m
        if nb==8:
            k.e(["s_and_b32 s34, s23, 1",f"s_add_u32 s34, s34, {2*f}",f"s_mul_i32 s34, s34, {W12_WAVE}","s_lshr_b32 s35, s23, 1",f"s_add_u32 s35, s35, {162+36}","s_lshl_b32 s35, s35, 10",
                 "s_add_u32 s34, s34, s35","s_add_u32 s19, s34, s26"])
        else:
            w=2*(nb&1)+f; rnd=nb>>1
            k.e(f"s_xor_b32 s33, s23, {f}")
            if rnd==0:
                k.e(["s_sub_u32 s34, s33, 8","s_add_u32 s35, s33, 4","s_cmp_ge_u32 s33, 32","s_cselect_b32 s34, s34, s35","s_cmp_lt_u32 s33, 24","s_cselect_b32 s33, s33, s34",
                     f"s_add_u32 s33, s33, 162"])
            else:
                k.e(f"s_add_u32 s33, s33, {162+36+18+(rnd-1)*36}")
            k.e(["s_lshl_b32 s33, s33, 10",f"s_add_u32 s33, s33, {w*W12_WAVE}","s_add_u32 s19, s33, s26"])
    process_units(k,dst_w2)
    k.e(f"s_branch {END}")
    k.label("k0_wo")
    srd(k,36,(20,21),D*D*2)
    k.e(["s_sub_u32 s14, s2, 208","s_lshl_b32 s14, s14, 2","s_add_u32 s14, s14, s3"])
    for q in range(2):
        k.e([f"v_add_u32 v11, {8*q}, v5",
             "s_mul_i32 s18, s14, 18","v_add_u32 v12, s18, v11",
             "v_lshrrev_b32 v13, 2, v11","v_and_b32 v13, 1, v13","v_lshlrev_b32 v13, 2, v13",
             "v_and_b32 v14, 3, v11",f"v_add_u32 v14, {4*q}, v14",
             "v_lshrrev_b32 v15, 1, v14","v_add_u32 v13, v13, v15",
             "s_sub_u32 s18, s14, 32","s_lshl_b32 s18, s18, 3","v_add_u32 v13, s18, v13","v_mul_u32_u24 v13, 18, v13","v_and_b32 v14, 1, v14","v_add_u32 v13, v13, v14","v_add_u32 v13, 16, v13",
             "s_cmp_lt_u32 s14, 32","s_cselect_b64 vcc, -1, 0","v_cndmask_b32 v12, v13, v12, vcc",
             "s_movk_i32 s15, 1152",f"v_mul_lo_u32 v{40+q}, v12, s15",f"v_add_u32 v{40+q}, v{40+q}, v6"])
    for m in range(9):
        for q in range(2):
            k.e([f"s_movk_i32 s19, {m*128}", f"s_add_u32 m0, s30, {m*2048+q*1024}", "s_nop 0",
                 f"buffer_load_dwordx4 v{40+q}, s[36:39], s19 offen lds"])
    def dst_wo(m,f):
        nt=2*m+f
        k.e(["s_lshl_b32 s19, s14, 10",f"s_add_u32 s19, s19, {WS_WO+nt*AFB}"])
    process_units(k,dst_wo)
    k.e(f"s_branch {END}")
    k.label("k0_qkv")
    srd(k,36,(16,17),D*3*D*2)
    k.e(["s_sub_u32 s14, s2, 217","s_lshr_b32 s15, s14, 3","s_and_b32 s14, s14, 7"])
    k.e(["s_lshl_b32 s18, s15, 2","s_add_u32 s19, s18, s14","s_mul_i32 s19, s19, 18",
         "v_add_u32 v10, s19, v2","v_add_u32 v11, 560, v10","v_cmp_gt_u32 vcc, 16, v2","s_nop 1","v_cndmask_b32 v10, v11, v10, vcc",
         "v_lshrrev_b32 v12, 1, v2","v_lshrrev_b32 v13, 1, v12","v_and_b32 v13, 1, v13","v_mul_u32_u24 v13, 576, v13",
         "v_and_b32 v14, 1, v12","v_lshrrev_b32 v15, 2, v12","v_lshlrev_b32 v15, 1, v15","v_add_u32 v14, v14, v15","v_add_u32 v14, s18, v14","v_mul_u32_u24 v14, 18, v14",
         "v_add_u32 v13, v13, v14","v_and_b32 v14, 1, v2","v_add_u32 v13, v13, v14","v_add_u32 v13, 16, v13",
         "v_mov_b32 v16, 0x20000000","v_cndmask_b32 v13, v16, v13, vcc",
         "s_sub_u32 s19, s14, 5","s_lshl_b32 s19, s19, 5","v_add_u32 v14, s19, v2","s_mul_i32 s22, s15, 72","s_add_u32 s22, s22, 1152","v_add_u32 v15, s22, v14",
         "v_cmp_gt_u32 vcc, 72, v14","s_nop 1","v_cndmask_b32 v15, v16, v15, vcc",
         "s_cmp_eq_u32 s14, 4","s_cselect_b64 vcc, -1, 0","v_cndmask_b32 v15, v15, v13, vcc",
         "s_cmp_lt_u32 s14, 4","s_cselect_b64 vcc, -1, 0","v_cndmask_b32 v10, v15, v10, vcc",
         "v_lshlrev_b32 v10, 1, v10",
         "v_mul_u32_u24 v11, %d, v3"%(4*3456),"v_add_u32 v10, v10, v11"])
    k.e(["s_lshl_b32 s22, s15, 2","s_and_b32 s23, s14, 3","s_add_u32 s22, s22, s23",f"s_mul_i32 s22, s22, {WQKV_WAVE}",
         "s_lshr_b32 s23, s14, 2","s_mul_i32 s23, s23, 36","s_add_u32 s23, s23, s3","s_lshl_b32 s23, s23, 10","s_add_u32 s22, s22, s23",f"s_add_u32 s22, s22, {WS_WQKV}",
         "s_mul_i32 s18, s3, %d"%(16*3456)])
    for m in range(9):
        for jj in range(8):
            off=m*64*3456+((jj&3)+8*(jj>>2))*3456
            k.e([f"s_add_u32 s19, s18, {off}", f"buffer_load_ushort v{52+8*m+jj}, v10, s[36:39], s19 offen"])
    k.e("s_waitcnt vmcnt(0)")
    for m in range(9):
        b=16+4*m
        for j in range(4):
            k.e(f"v_lshl_or_b32 v{b+j}, v{52+8*m+2*j+1}, 16, v{52+8*m+2*j}")
        k.e([f"s_add_u32 s19, s22, {m*4096}", f"buffer_store_dwordx4 v[{b}:{b+3}], v1, s[8:11], s19 offen"])
    k.label(END)
    if Kern.STAMPS:
        import os
        k.e("s_waitcnt vmcnt(0)"); k.stamp(1); k.stamp_dump(int(os.environ.get("K0WG","0")))
    k.e("s_endpgm")
    return k, NWG0, 256, 73728
```

```python
from asmlib import *
from layout import *
from gemm import *
from k0 import fbits, ws_srd, layer_srd, layer_aliases
import os
LS="s[44:47]"
def xdma(k, i, nw, sbase_lds, sbase_g, srd=LS, tmp="s16"):
    return [f"s_add_u32 m0, {sbase_lds}, {i*nw*1024}", f"s_add_u32 {tmp}, {sbase_g}, {i*nw*1024}",
            ("vm",f"buffer_load_dwordx4 v1, {srd}, {tmp} offen lds",("X",i))]
def gen_k1():
    k=Kern("k1_qkv", nvgpr=256, nagpr=256, nsgpr=64); layer_aliases(k,"k1_qkv")
    END=k.name+"_end"
    k.e([f"s_cmp_ge_u32 s2, 256", f"s_cbranch_scc1 {END}",
         "s_load_dwordx2 s[4:5], s[0:1], 64"]); k.stamp(0)
    k.e(["v_lshrrev_b32 v1, 6, v0","v_and_b32 v0, 63, v0","s_nop 0","v_readfirstlane_b32 s3, v1",
         "v_lshlrev_b32 v1, 4, v0","v_and_b32 v2, 31, v0","v_lshrrev_b32 v3, 5, v0","v_add_u32 v4, 32768, v1",
         "s_lshr_b32 s16, s2, 3","s_and_b32 s13, s2, 1","s_lshl_b32 s13, s13, 2","s_and_b32 s17, s16, 3","s_add_u32 s13, s13, s17",
         "s_lshr_b32 s12, s2, 1","s_and_b32 s12, s12, 3","s_lshl_b32 s12, s12, 3","s_lshr_b32 s16, s16, 2","s_add_u32 s12, s12, s16",
         "s_and_b32 s15, s3, 1",f"s_mul_i32 s15, s15, {AFB}","s_lshr_b32 s14, s3, 1","s_lshl_b32 s14, s14, 10","s_add_u32 s15, s15, s14",
         f"s_mul_i32 s14, s12, {2*AFB}",f"s_add_u32 s14, s14, {L_XN2}","s_add_u32 s14, s14, s15",
         "s_lshl_b32 s20, s13, 2","s_add_u32 s20, s20, s3",f"s_mul_i32 s20, s20, {WQKV_WAVE}",f"s_add_u32 s20, s20, {WS_WQKV}",
         "s_waitcnt lgkmcnt(0)"])
    k.stamp(1)
    layer_srd(k); ws_srd(k,8,(4,5))
    RING=16; R=18; ACC0=96; ACC1=128; BT=160
    st=Stream(k,RING,R,72,btail=BT)
    def xd(i): return [f"s_add_u32 m0, s15, {i*2048}", f"s_add_u32 s16, s14, {i*2048}", ("vm",f"buffer_load_dwordx4 v1, {LS}, s16 offen lds",("X",i))]
    for i in range(18):
        for it in xd(i): st.place(it)
    st.prefetch(6)
    k.e(["s_lshl_b32 s21, s13, 2","s_add_u32 s22, s21, s3",
         "s_lshl_b32 s23, s12, 1",
         "s_lshl_b32 s24, s22, 16","s_lshl_b32 s25, s23, 10","s_add_u32 s24, s24, s25",f"s_add_u32 s24, s24, {CUR+L_Q1}",
         f"s_mul_i32 s25, s22, {KV_HEAD}",f"s_mul_i32 s26, s23, {KVREC}","s_add_u32 s25, s25, s26",f"s_add_u32 s25, s25, {CUR+L_KV}",
         f"s_mov_b32 s27, {fbits(QSCALE)}"])
    k.vm_wait(("X",17)); k.e("s_barrier"); k.stamp(2)
    bj=lambda u,kap: f"ds_read_b128 {st.breg(u,kap)}, v1 offset:{u*AFB+kap*1024}" if u*AFB+kap*1024<65536 else f"ds_read_b128 {st.breg(u,kap)}, v4 offset:{u*AFB+kap*1024-32768}"
    LA=3
    st.tile((ACC0,ACC0+16),list(range(36)),bjit=bj,la=LA,boost=2)
    k.stamp(3)
    PK=192
    def epi_qk():
        f=[]
        for u in range(2):
            a=ACC0+16*u; p=PK+8*u
            for i in range(8): f.append(f"v_mul_f32 v{a+i}, s27, v{a+i}")
            for j in range(4): f.append(f"v_cvt_pk_bf16_f32 v{p+j}, v{a+2*j}, v{a+2*j+1}")
            for j in range(4): f.append(f"v_cvt_pk_bf16_f32 v{p+4+j}, v{a+8+2*j}, v{a+8+2*j+1}")
            f.append(("vm",f"buffer_store_dwordx4 v[{p}:{p+3}], v1, {LS}, s24 offen offset:{u*1024}",None))
            f.append(("vm",f"buffer_store_dwordx4 v[{p+4}:{p+7}], v1, {LS}, s25 offen offset:{u*KVREC}",None))
        return f
    LV=k.name+"_v"
    addr_left=["v_mov_b32 v5, 1.0","v_mov_b32 v6, s27","v_cmp_gt_u32 vcc, 32, v0","s_nop 1","v_cndmask_b32 v5, v5, v6, vcc",
         "s_lshl_b32 s28, s21, 13","s_lshl_b32 s29, s23, 7","s_add_u32 s28, s28, s29",f"s_add_u32 s28, s28, {CUR+L_Q2}",
         f"s_mul_i32 s29, s21, {KV_HEAD}",f"s_mul_i32 s30, s23, {KVREC}","s_add_u32 s29, s29, s30",f"s_add_u32 s29, s29, {CUR+L_KV+2304}",
         "v_mov_b32 v7, s29","v_mov_b32 v8, s28","v_cndmask_b32 v7, v7, v8, vcc","v_lshlrev_b32 v8, 2, v2","v_add_u32 v7, v7, v8",
         f"v_mov_b32 v8, {KV_HEAD}","v_mov_b32 v9, 8192","v_cndmask_b32 v8, v8, v9, vcc",
         f"v_mov_b32 v9, {KVREC}","v_mov_b32 v10, 128","v_cndmask_b32 v9, v9, v10, vcc"]
    addr_v=["s_sub_u32 s28, s3, 1","s_lshl_b32 s28, s28, 5","v_add_u32 v5, s28, v2",
         "v_mul_u32_u24 v6, 57, v5","v_lshrrev_b32 v6, 10, v6",
         "v_mul_u32_u24 v7, 18, v6","v_sub_u32 v7, v5, v7",
         "v_subrev_u32 v8, 72, v5","v_mov_b32 v9, 18",
         "v_cmp_gt_u32 vcc, 72, v5","s_nop 1","v_cndmask_b32 v6, v8, v6, vcc","v_cndmask_b32 v7, v9, v7, vcc",
         "s_mov_b64 s[32:33], vcc",
         f"s_mov_b32 s30, {KV_HEAD}","v_mul_lo_u32 v6, v6, s30","v_lshlrev_b32 v7, 4, v7","v_add_u32 v6, v6, v7",
         "v_mul_u32_u24 v7, 320, v3","v_add_u32 v6, v6, v7",
         "v_mov_b32 v8, 0x7f000000","v_cmp_gt_u32 vcc, 76, v5","s_nop 1","v_cndmask_b32 v6, v8, v6, vcc",
         f"s_mul_i32 s28, s21, {KV_HEAD}",f"s_mul_i32 s29, s23, {KVREC}","s_add_u32 s28, s28, s29",f"s_add_u32 s28, s28, {CUR+L_KV+1024}",
         "v_mov_b32 v9, 0x3f803f80"]
    k.e(["s_cmp_lg_u32 s3, 0",f"s_cbranch_scc1 {LV}"])
    save=(list(k.vm),list(k.lg),st.n,st.issued)
    st.tile((ACC1,ACC1+16),list(range(36)),fillers=epi_qk()+addr_left,fill_start=5)
    k.stamp(4)
    k.e("s_nop 10")
    for u in range(2):
        a=ACC1+16*u
        for i in range(8): k.e(f"v_mul_f32 v{a+i}, v5, v{a+i}")
        for j in range(4): k.e(f"v_cvt_pk_bf16_f32 v{PK+j}, v{a+2*j}, v{a+2*j+1}")
        k.e(f"v_mov_b32 v10, v7")
        for j in range(4):
            k.e(f"buffer_store_dword v{PK+j}, v10, {LS}, 0 offen")
            k.e("v_add_u32 v10, v10, v8")
        k.e("v_add_u32 v7, v7, v9")
    k.stamp(5); k.stamp_dump()
    k.e(f"s_branch {END}")
    k.label(LV)
    k.vm,k.lg,st.n,st.issued=list(save[0]),list(save[1]),save[2],save[3]
    st.tile((ACC1,ACC1+16),list(range(36)),fillers=epi_qk()+addr_v,swap=True,fill_start=5)
    k.stamp(4)
    k.e("s_nop 10")
    for u in range(2):
        a=ACC1+16*u; p=PK+8*u
        for j in range(8): k.e(f"v_cvt_pk_bf16_f32 v{p+j}, v{a+2*j}, v{a+2*j+1}")
        for j in range(8): k.e(f"v_cndmask_b32 v{p+j}, v9, v{p+j}, s[32:33]")
        k.e(f"buffer_store_dwordx4 v[{p}:{p+3}], v6, {LS}, s28 offen offset:{u*KVREC}")
        k.e(f"buffer_store_dwordx4 v[{p+4}:{p+7}], v6, {LS}, s28 offen offset:{u*KVREC+640}")
    k.stamp(5); k.stamp_dump()
    k.label(END); k.e("s_endpgm")
    return k,256,256,73728
```

```python
from asmlib import *
from layout import *
from k0 import fbits, ws_srd, layer_srd, layer_aliases
LS="s[44:47]"
Q1=8; Q2=12; K1=16; K2=20; V0=24; V1=28; S=(32,48); P=64; O=72
AK1=4; AK2=5; AV=6
def mf16(d,a,b,c): return f"v_mfma_f32_32x32x16_bf16 v[{d}:{d+15}], v[{a}:{a+3}], v[{b}:{b+3}], {c}"
def mf8(d,a,b,c): return f"v_mfma_f32_32x32x8_bf16 v[{d}:{d+15}], v[{a}:{a+1}], v[{b}:{b+1}], {c}"
def acc(d): return f"v[{d}:{d+15}]"
def tile_body(t):
    c=S[t&1]; n=S[(t+1)&1]
    ex=lambda i: f"v_exp_f32 v{c+i}, v{c+i}"
    cv=lambda j: f"v_cvt_pk_bf16_f32 v{P+j}, v{c+2*j}, v{c+2*j+1}"
    o=[]
    o+=[ex(0),ex(1), mf16(O,V1,P+4,acc(O)),
        f"ds_read_b128 v[{V0}:{V0+3}], v{AV} offset:{t*KVREC}", f"ds_read_b128 v[{V1}:{V1+3}], v{AV} offset:{t*KVREC+640}",
        ex(2),ex(3),cv(0),"s_waitcnt lgkmcnt(2)", mf16(n,K1,Q1,"0"),
        ex(4),ex(5),cv(1),ex(6),ex(7), mf8(n,K2,Q2,acc(n)),
        f"ds_read_b128 v[{K1}:{K1+3}], v{AK1} offset:{(t+2)*KVREC}", f"ds_read_b32 v{K2}, v{AK2} offset:{(t+2)*KVREC}",
        cv(2),ex(8),cv(3),ex(9),ex(10),"s_waitcnt lgkmcnt(2)", mf16(O,V0,P,acc(O)),
        ex(11),cv(4),ex(12),ex(13),cv(5),ex(14),ex(15),cv(6),cv(7)]
    return o
def gen_k2():
    k=Kern("k2_attn", nvgpr=128, nsgpr=64); layer_aliases(k,"k2_attn")
    B=CUR; END=k.name+"_end"
    k.e([f"s_cmp_ge_u32 s2, 256", f"s_cbranch_scc1 {END}",
         "s_load_dwordx2 s[4:5], s[0:1], 64"]); k.stamp(0)
    k.e(["v_lshrrev_b32 v1, 6, v0","v_and_b32 v0, 63, v0","s_nop 0","v_readfirstlane_b32 s3, v1",
         "v_lshlrev_b32 v1, 4, v0","v_and_b32 v2, 31, v0","v_lshrrev_b32 v3, 5, v0",
         "s_and_b32 s12, s2, 7","s_lshl_b32 s12, s12, 2","s_lshr_b32 s13, s2, 3","s_and_b32 s13, s13, 3","s_add_u32 s12, s12, s13",
         "s_lshr_b32 s13, s2, 5","s_lshl_b32 s13, s13, 3","s_add_u32 s13, s13, s3",
         "s_lshl_b32 s14, s12, 16","s_lshl_b32 s15, s13, 10","s_add_u32 s14, s14, s15",f"s_add_u32 s14, s14, {B+L_Q1}",
         "s_lshl_b32 s15, s12, 13","s_lshl_b32 s16, s13, 7","s_add_u32 s15, s15, s16",f"s_add_u32 s15, s15, {B+L_Q2}",
         "v_lshlrev_b32 v7, 2, v2","v_mov_b32 v93, 0x7f000000","v_cmp_gt_u32 vcc, 32, v0",
         f"s_mul_i32 s16, s12, {KV_HEAD}","s_lshl_b32 s17, s3, 10","s_add_u32 s16, s16, s17",f"s_add_u32 s16, s16, {B+L_KV}",
         "v_cndmask_b32 v93, v93, v7, vcc",
         "s_waitcnt lgkmcnt(0)"])
    k.stamp(1)
    layer_srd(k); ws_srd(k,8,(4,5))
    k.e([f"buffer_load_dwordx4 v[{Q1}:{Q1+3}], v1, {LS}, s14 offen", f"buffer_load_dword v{Q2}, v93, {LS}, s15 offen"])
    dma=lambda n: [f"s_add_u32 m0, s17, {n*8192}", f"s_add_u32 s18, s16, {n*8192}", f"buffer_load_dwordx4 v1, {LS}, s18 offen lds"]
    for n in range(3): k.e(dma(n))
    k.e([f"v_mov_b32 v{AK1}, v1", f"v_add_u32 v{AK2}, 2304, v7", "v_mul_u32_u24 v94, 320, v3","v_lshlrev_b32 v95, 4, v2","v_add_u32 v94, v94, v95",f"v_add_u32 v{AV}, 1024, v94",
         f"v_mov_b32 v{Q2+1}, 0", f"v_mov_b32 v{K2+1}, 0"])
    for i in range(16): k.e(f"v_mov_b32 v{O+i}, 0")
    for i in range(4): k.e([f"v_mov_b32 v{P+4+i}, 0", f"v_mov_b32 v{V1+i}, 0"])
    k.e(["s_waitcnt vmcnt(0)","s_barrier"]); k.stamp(2)
    k.e([f"ds_read_b128 v[{K1}:{K1+3}], v{AK1}", f"ds_read_b32 v{K2}, v{AK2}", "s_waitcnt lgkmcnt(0)",
         mf16(S[0],K1,Q1,"0"), mf8(S[0],K2,Q2,acc(S[0])),
         f"ds_read_b128 v[{K1}:{K1+3}], v{AK1} offset:{KVREC}", f"ds_read_b32 v{K2}, v{AK2} offset:{KVREC}",
         "s_nop 10"])
    LOOP=k.name+"_loop"
    for t in range(8):
        b=tile_body(t)
        if t<4:
            ex=[]
            for n in range(3+4*t,7+4*t): ex+=dma(n)
            b=b[:5]+ex[:6]+b[5:17]+ex[6:]+b[17:]
        k.e(b)
        if t==4:
            k.code_prefetch("k3_wo0_kernel","k6_red_codeend",8,96)
            k.code_prefetch("k3_wo0_kernel+32768*8","k6_red_codeend",8,96) if False else None
    adv=[f"v_add_u32 v{AK1}, {8*KVREC}, v{AK1}", f"v_add_u32 v{AK2}, {8*KVREC}, v{AK2}", f"v_add_u32 v{AV}, {8*KVREC}, v{AV}"]
    k.e(["s_and_b32 s21, s2, 3",f"s_mul_i32 s21, s21, {2*4*W12_WAVE}","s_lshr_b32 s22, s2, 3","s_mul_i32 s22, s22, 81"," s_lshl_b32 s22, s22, 10","s_add_u32 s21, s21, s22",f"s_add_u32 s21, s21, {WS_W12}",
         "s_add_u32 s22, s21, %d"%(80*1024),"s_lshl_b32 s23, s3, 10","s_add_u32 s21, s21, s23"])
    k.e(adv+["s_waitcnt vmcnt(0)","s_barrier","s_mov_b32 s20, 1"])
    body=[]
    for t in range(8): body+=tile_body(t)
    k.e(".p2align 6")
    k.label(LOOP)
    for _ in range(2): k.e(["s_min_u32 s23, s21, s22","buffer_load_dwordx4 v[104:107], v1, s[8:11], s23 offen","s_add_u32 s21, s21, 8192"])
    k.e(body)
    k.e(adv+["s_add_u32 s20, s20, 1","s_cmp_lt_u32 s20, 8",f"s_cbranch_scc1 {LOOP}"])
    k.e(["s_nop 0", mf16(O,V1,P+4,acc(O))]); k.stamp(3)
    k.e(["s_waitcnt lgkmcnt(0)","s_nop 10"])
    CHK=k.name+"_chk"; FIN=k.name+"_fin"; SLOW=k.name+"_slow"
    def lbcast():
        k.e([f"v_mov_b32 v32, v{O+10}", f"v_mov_b32 v33, v{O+10}", "s_nop 1", "v_permlane32_swap_b32 v32, v33", "s_nop 1"])
    lbcast()
    k.e([f"v_mov_b32 v34, {fbits(2.0**-64)}", f"v_mov_b32 v35, {fbits(2.0**64)}", f"v_mov_b32 v36, {fbits(2.0**126)}",
         "v_cmp_ge_f32 s[22:23], v32, v34","v_cmp_le_f32 s[24:25], v32, v35","s_nop 1","s_and_b64 s[22:23], s[22:23], s[24:25]"])
    for i in range(8):
        k.e([f"v_cmp_lt_f32 s[24:25], |v{O+i}|, v36","s_nop 1","s_and_b64 s[22:23], s[22:23], s[24:25]"])
    k.e(["v_cmp_lt_u32 s[26:27], 31, v0"])
    for i in (8,9):
        k.e([f"v_cmp_lt_f32 s[24:25], |v{O+i}|, v36","s_nop 1","s_or_b64 s[24:25], s[24:25], s[26:27]","s_and_b64 s[22:23], s[22:23], s[24:25]"])
    k.e(["s_cmp_eq_u64 s[22:23], -1", f"s_cbranch_scc0 {SLOW}"])
    k.label(FIN)
    k.e(["v_rcp_f32 v33, v32","s_nop 0"])
    for i in range(10): k.e(f"v_mul_f32 v{O+i}, v{O+i}, v33")
    for j in range(5): k.e(f"v_cvt_pk_bf16_f32 v{40+j}, v{O+2*j}, v{O+2*j+1}")
    k.e([f"s_mul_i32 s14, s13, {AFB}","s_lshl_b32 s15, s12, 10","s_add_u32 s15, s15, s14",f"s_add_u32 s15, s15, {B+L_O}",
         "buffer_store_dwordx4 v[40:43], v1, s[44:47], s15 offen",
         "s_lshr_b32 s16, s12, 3","s_add_u32 s16, s16, 32","s_lshl_b32 s16, s16, 10","s_add_u32 s16, s16, s14",
         "s_lshr_b32 s17, s12, 2","s_and_b32 s17, s17, 1","s_lshl_b32 s17, s17, 9","s_add_u32 s16, s16, s17",
         "s_and_b32 s17, s12, 3","s_lshl_b32 s17, s17, 2","s_add_u32 s16, s16, s17",f"s_add_u32 s16, s16, {B+L_O}",
         "v_lshlrev_b32 v7, 4, v2","v_mov_b32 v93, 0x7f000000","v_cmp_gt_u32 vcc, 32, v0","s_nop 1","v_cndmask_b32 v93, v93, v7, vcc",
         "buffer_store_dword v44, v93, s[44:47], s16 offen"])
    k.stamp(4); k.stamp_dump()
    k.e(f"s_branch {END}")
    k.label(SLOW)
    k.e([f"v_mov_b32 v{AK1}, v1","v_lshlrev_b32 v7, 2, v2",f"v_add_u32 v{AK2}, 2304, v7", "v_mul_u32_u24 v94, 320, v3","v_lshlrev_b32 v95, 4, v2","v_add_u32 v94, v94, v95",f"v_add_u32 v{AV}, 1024, v94",
         "v_mov_b32 v90, 0xff7fffff","s_mov_b32 s20, 0"])
    for i in range(16): k.e(f"v_mov_b32 v{O+i}, 0")
    SL=k.name+"_sl"
    k.label(SL)
    c=S[0]
    k.e([f"ds_read_b128 v[{K1}:{K1+3}], v{AK1}", f"ds_read_b32 v{K2}, v{AK2}", f"ds_read_b128 v[{V0}:{V0+3}], v{AV}", f"ds_read_b128 v[{V1}:{V1+3}], v{AV} offset:640",
         "s_waitcnt lgkmcnt(0)", mf16(c,K1,Q1,"0"), mf8(c,K2,Q2,acc(c)), "s_nop 11"])
    k.e(f"v_max_f32 v91, v{c}, v{c+1}")
    for i in range(2,16,2): k.e(f"v_max3_f32 v91, v91, v{c+i}, v{c+i+1}")
    k.e(["v_mov_b32 v92, v91","s_nop 1","v_permlane32_swap_b32 v91, v92","s_nop 1","v_max3_f32 v91, v91, v92, v90",
         "v_sub_f32 v92, v90, v91","v_exp_f32 v92, v92","v_mov_b32 v90, v91","s_nop 0"])
    for i in range(16): k.e(f"v_mul_f32 v{O+i}, v{O+i}, v92")
    for i in range(16): k.e(f"v_sub_f32 v{c+i}, v{c+i}, v91")
    for i in range(16): k.e(f"v_exp_f32 v{c+i}, v{c+i}")
    k.e("s_nop 0")
    for j in range(8): k.e(f"v_cvt_pk_bf16_f32 v{P+j}, v{c+2*j}, v{c+2*j+1}")
    k.e(["s_nop 1", mf16(O,V0,P,acc(O)), mf16(O,V1,P+4,acc(O)),
         f"v_add_u32 v{AK1}, {KVREC}, v{AK1}", f"v_add_u32 v{AK2}, {KVREC}, v{AK2}", f"v_add_u32 v{AV}, {KVREC}, v{AV}",
         "s_nop 9","s_add_u32 s20, s20, 1","s_cmp_lt_u32 s20, 64",f"s_cbranch_scc1 {SL}","s_nop 4"])
    lbcast()
    k.e(f"s_branch {FIN}")
    k.label(END); k.e("s_endpgm")
    p=check_hazards(body+body,k.name+"(loop)")
    for x in p: print("HAZARD",x)
    return k,256,512,163840
```

```python
from asmlib import *
from layout import *
from gemm import *
from k0 import fbits, ws_srd, cross_half_add, layer_srd, layer_aliases
LS="s[44:47]"
def gen_k3():
    k=Kern("k3_wo", nvgpr=256, nagpr=256, nsgpr=64); layer_aliases(k,"k3_wo")
    END=k.name+"_end"
    k.e([f"s_cmp_ge_u32 s2, 192", f"s_cbranch_scc1 {END}",
         "s_load_dwordx2 s[4:5], s[0:1], 64"]); k.stamp(0)
    k.e(["v_lshrrev_b32 v1, 6, v0","v_and_b32 v0, 63, v0","s_nop 0","v_readfirstlane_b32 s3, v1",
         "v_lshlrev_b32 v1, 4, v0","v_and_b32 v2, 31, v0","v_lshrrev_b32 v3, 5, v0","v_add_u32 v4, 32768, v1",
         "s_lshr_b32 s12, s2, 3","s_mul_i32 s13, s12, 43","s_lshr_b32 s13, s13, 8",
         "s_mul_i32 s14, s13, 6","s_sub_u32 s14, s12, s14",
         "s_lshl_b32 s13, s13, 3","s_and_b32 s12, s2, 7","s_add_u32 s12, s12, s13",
         "s_mul_i32 s13, s14, 3","s_add_u32 s13, s13, s3",
         f"s_mul_i32 s14, s12, {2*AFB}",f"s_add_u32 s15, s14, {CUR+L_O}",
         f"s_mul_i32 s20, s13, {AFB}",f"s_add_u32 s20, s20, {WS_WO}",
         "s_waitcnt lgkmcnt(0)"]); k.stamp(1)
    assert all((r*43>>8)==r//6 for r in range(24))
    layer_srd(k); ws_srd(k,8,(4,5))
    RING=16; R=18; ACC0=96; BT=160
    st=Stream(k,RING,R,36,btail=BT)
    def xd(i):
        return [f"s_add_u32 s17, s3, {3*i}","s_and_b32 s18, s17, 1",f"s_mul_i32 s18, s18, {AFB}","s_lshr_b32 s17, s17, 1","s_lshl_b32 s17, s17, 10","s_add_u32 m0, s17, s18","s_add_u32 s17, m0, s15",
                ("vm",f"buffer_load_dwordx4 v1, {LS}, s17 offen lds",("X",i))]
    for i in range(24):
        for it in xd(i): st.place(it)
    st.prefetch(6)
    RES=200
    k.e(["s_lshl_b32 s21, s13, 11","s_add_u32 s21, s21, s14",f"s_add_u32 s22, s21, {L_X2}",f"s_add_u32 s23, s22, {AFB}",f"s_add_u32 s24, s21, {CUR+L_X1}",f"s_add_u32 s25, s24, {AFB}"])
    k.vm_wait(("X",23)); k.e("s_barrier"); k.stamp(2)
    bj=lambda u,kap: f"ds_read_b128 {st.breg(u,kap)}, v1 offset:{u*AFB+kap*1024}" if u*AFB+kap*1024<65536 else f"ds_read_b128 {st.breg(u,kap)}, v4 offset:{u*AFB+kap*1024-32768}"
    LA=3
    post={}
    res=[("vm",f"buffer_load_dwordx4 v[{RES+8*u+4*s}:{RES+8*u+4*s+3}], v1, {LS}, s{22+u} offen offset:{s*1024}","R") for u in range(2) for s in range(2)]
    post[12]=res
    at={}
    fl=["s_lshl_b32 s26, s12, 1",f"s_mul_i32 s26, s26, {ST_TT}","s_lshr_b32 s27, s13, 1","s_lshl_b32 s27, s27, 9","s_add_u32 s26, s26, s27","s_and_b32 s27, s13, 1","s_lshl_b32 s27, s27, 3","s_add_u32 s26, s26, s27",f"s_add_u32 s26, s26, {CUR+L_ST}",
        "v_lshlrev_b32 v5, 4, v2"]
    st.tile((ACC0,ACC0+16),list(range(36)),bjit=bj,la=LA,post=post,at=at,boost=2,fillers=fl,fill_start=40)
    k.stamp(3)
    k.vm_wait("R")
    k.e("s_nop 8")
    PK=224
    for u in range(2):
        a=ACC0+16*u; r=RES+8*u; p=PK+8*u
        for j in range(8):
            k.e([f"v_lshlrev_b32 v6, 16, v{r+j}", f"v_and_b32 v7, 0xffff0000, v{r+j}", f"v_add_f32 v{a+2*j}, v{a+2*j}, v6", f"v_add_f32 v{a+2*j+1}, v{a+2*j+1}, v7"])
        for j in range(8): k.e(f"v_cvt_pk_bf16_f32 v{p+j}, v{a+2*j}, v{a+2*j+1}")
        k.e(f"buffer_store_dwordx4 v[{p}:{p+3}], v1, {LS}, s{24+u} offen")
        k.e(f"buffer_store_dwordx4 v[{p+4}:{p+7}], v1, {LS}, s{24+u} offen offset:1024")
    for u in range(2):
        a=ACC0+16*u; s=8+2*u
        k.e([f"v_add_f32 v{s}, v{a}, v{a+1}",f"v_add_f32 v12, v{a+2}, v{a+3}"])
        for i in range(4,16,2): k.e([f"v_add_f32 v{s}, v{s}, v{a+i}",f"v_add_f32 v12, v12, v{a+i+1}"])
        k.e(f"v_add_f32 v{s}, v{s}, v12")
        cross_half_add(k,s,12)
        k.e([f"v_mul_f32 v13, {fbits(1.0/32)}, v{s}",f"v_mov_b32 v{s+1}, 0","v_mov_b32 v12, 0"])
        for i in range(0,16,2):
            k.e([f"v_sub_f32 v14, v{a+i}, v13",f"v_sub_f32 v15, v{a+i+1}, v13",f"v_fmac_f32 v{s+1}, v14, v14","v_fmac_f32 v12, v15, v15"])
        k.e(f"v_add_f32 v{s+1}, v{s+1}, v12")
        cross_half_add(k,s+1,12)
        k.e(f"buffer_store_dwordx2 v[{s}:{s+1}], v5, {LS}, s26 offen")
        if u==0: k.e(f"s_add_u32 s26, s26, {ST_TT}")
    k.stamp(4); k.stamp_dump()
    k.label(END); k.e("s_endpgm")
    return k,192,192,73728
```

```python
from asmlib import *
from layout import *
from gemm import *
from k0 import fbits, ws_srd, layer_srd, layer_aliases
LS="s[44:47]"
HO=73728; XO=147456
BX=4; BH=8; HW=12; HH=14; XW=15; XR=16; NM=17; C1=19; RS=21; CSA=23; CS=24; TMP=40; PK=48; RING=56; AX=128; AY=160; BT=192; XT=224
LOG2E=1.4426950408889634
import os
X=os.environ.get('X45','')
def gen_k45():
    k=Kern("k45_mlp", nvgpr=256, nagpr=256, nsgpr=64); layer_aliases(k,"k45_mlp")
    B=CUR; END=k.name+"_end"
    k.e([f"s_cmp_ge_u32 s2, 256", f"s_cbranch_scc1 {END}",
         "s_load_dwordx2 s[4:5], s[0:1], 64"]); k.stamp(0)
    k.e(["v_lshrrev_b32 v1, 6, v0","v_and_b32 v0, 63, v0","s_nop 0","v_readfirstlane_b32 s3, v1",
         "v_lshlrev_b32 v1, 4, v0","v_and_b32 v2, 31, v0","v_lshrrev_b32 v3, 5, v0",
         "s_lshr_b32 s16, s2, 3","s_and_b32 s13, s2, 3","s_lshl_b32 s13, s13, 1","s_and_b32 s17, s16, 1","s_add_u32 s13, s13, s17",
         "s_lshr_b32 s12, s2, 2","s_and_b32 s12, s12, 1","s_lshl_b32 s12, s12, 4","s_lshr_b32 s16, s16, 1","s_add_u32 s12, s12, s16",
         "s_and_b32 s14, s3, 1","s_lshr_b32 s15, s3, 1",
         "s_waitcnt lgkmcnt(0)"]); k.stamp(1)
    layer_srd(k); ws_srd(k,8,(4,5))
    st=Stream(k,RING,18,324,btail=BT)
    k.e([f"s_mul_i32 s19, s14, {AFB}","s_lshl_b32 s18, s15, 10","s_add_u32 s19, s19, s18",
         f"s_mul_i32 s18, s12, {2*AFB}",f"s_add_u32 s18, s18, {B+L_X1}","s_add_u32 s18, s18, s19",
         "s_lshl_b32 s20, s13, 2","s_add_u32 s20, s20, s3",f"s_mul_i32 s20, s20, {W12_WAVE}",f"s_add_u32 s20, s20, {WS_W12}"])
    def xd(i): return [f"s_add_u32 m0, s19, {i*2048}", f"s_add_u32 s21, s18, {i*2048}", ("vm",f"buffer_load_dwordx4 v1, {LS}, s21 offen lds",("X",i))]
    for i in range(18):
        for it in xd(i): st.place(it)
    STR=lambda r: (160+r if r<32 else 48+r-32)
    k.e(["s_lshl_b32 s16, s12, 1","v_xor_b32 v40, s14, v3","v_add_u32 v40, s16, v40",f"v_mul_u32_u24 v40, {ST_TT}, v40","v_lshlrev_b32 v41, 4, v2","v_add_u32 v40, v40, v41",
         f"s_mov_b32 s17, {B+L_ST}"])
    for j in range(9):
        if j==8: k.e("s_add_u32 s17, s17, 4096")
        k.vm_op(f"buffer_load_dwordx4 v[{STR(4*j)}:{STR(4*j)+3}], v40, {LS}, s17 offen offset:{(512*j)%4096}","ST")
    k.e([f"s_mul_i32 s22, s13, {18*128}",f"s_add_u32 s22, s22, {WS_CS1}",f"v_lshlrev_b32 v{CSA}, 6, v3"])
    def cs_load(jexpr_s):
        if 'nocs' in X: return []
        return [("vm",f"buffer_load_dwordx4 v[{CS+4*g}:{CS+4*g+3}], v{CSA}, s[8:11], {jexpr_s} offen offset:{16*g}","CS") for g in range(4)]
    k.e(["s_add_u32 s23, s15, 16","s_lshl_b32 s23, s23, 7","s_add_u32 s23, s23, s22",
         "s_lshl_b32 s24, s3, 7","s_add_u32 s24, s24, s22"])
    for it in cs_load("s23"): st.place(it)
    st.prefetch(6)
    for u in range(2):
        k.e([f"s_xor_b32 s17, s14, {u}",f"s_mul_i32 s17, s17, {AFB}"])
        for kp in range(2):
            k.e([f"s_xor_b32 s21, s14, {kp}","s_lshl_b32 s21, s21, 10","s_add_u32 s21, s21, s17",f"v_add_u32 v{BX+2*u+kp}, s21, v1",f"v_add_u32 v{BH+2*u+kp}, {HO}, v{BX+2*u+kp}"])
        k.e(["s_lshl_b32 s21, s3, 11","s_add_u32 s21, s21, s17",f"s_add_u32 s21, s21, {HO}",f"v_add_u32 v{HW+u}, s21, v1"])
    k.e([f"s_mul_i32 s17, s14, {AFB}","s_lshl_b32 s21, s15, 11","s_add_u32 s21, s21, s17",f"s_add_u32 s21, s21, {HO+32*1024}",f"v_add_u32 v{HH}, s21, v1",
         "s_lshl_b32 s21, s3, 12",f"s_add_u32 s21, s21, {XO}",f"v_add_u32 v{XW}, s21, v1",
         "s_xor_b32 s21, s3, 1","s_lshl_b32 s21, s21, 12",f"s_add_u32 s21, s21, {XO}",f"v_add_u32 v{XR}, s21, v1"])
    for u in range(2):
        k.e([f"s_xor_b32 s17, s14, {u}","s_add_u32 s17, s17, s16",f"s_mul_i32 s17, s17, {AFB}",f"s_mul_i32 s21, s13, {AF_SIZE}","s_add_u32 s17, s17, s21",f"s_add_u32 s{26+u}, s17, {B+L_PART}"])
    k.e(["s_lshl_b32 s21, s3, 11","s_add_u32 s28, s26, s21","s_add_u32 s29, s27, s21",
         "s_lshl_b32 s21, s15, 11","s_add_u32 s30, s26, s21",f"s_add_u32 s30, s30, {32*1024}"])
    sf=[("vmwait","ST"),f"v_add_f32 v40, v{STR(0)}, v{STR(2)}",f"v_add_f32 v42, v{STR(1)}, v{STR(3)}"]
    for b in range(2,18): sf+=[f"v_add_f32 v40, v40, v{STR(2*b)}",f"v_add_f32 v42, v42, v{STR(2*b+1)}"]
    sf+=[f"v_mul_f32 v40, {fbits(1.0/576)}, v40","v_mov_b32 v41, 0"]
    for b in range(18): sf+=[f"v_mul_f32 v43, {fbits(1.0/32)}, v{STR(2*b)}","v_sub_f32 v43, v43, v40","v_fmac_f32 v41, v43, v43"]
    sf+=[f"v_fmac_f32 v42, {fbits(32.0)}, v41",f"v_mov_b32 v43, {fbits(1e-5)}",f"v_fmac_f32 v43, {fbits(1.0/576)}, v42",f"v_rsq_f32 v{RS}, v43",
         f"v_sub_f32 v{NM}, 0, v40",f"v_mov_b32 v{NM+1}, v{NM}",f"v_mov_b32 v{RS+1}, v{RS}","s_nop 1",
         f"v_permlane32_swap_b32 v{NM}, v{NM+1}",f"v_permlane32_swap_b32 v{RS}, v{RS+1}","s_nop 1",
         f"v_mul_f32 v{C1}, {fbits(-LOG2E)}, v{RS}",f"v_mul_f32 v{C1+1}, {fbits(-LOG2E)}, v{RS+1}"]
    k.stamp(2)
    k.vm_wait(("X",17)); k.e("s_barrier"); k.stamp(3)
    def bjX(u,kap): return f"ds_read_b128 {st.breg(u,kap)}, v{BX+2*u+(kap&1)} offset:{(kap&~1)*1024}"
    def bjH(u,kap): return f"ds_read_b128 {st.breg(u,kap)}, v{BH+2*u+(kap&1)} offset:{(kap&~1)*1024}"
    def silu(a,u,waddr,woff):
        f=[]
        if 'nosilu' in X: return f
        for g in range(4):
            t=TMP+4*(g&1); R=range(4*g,4*g+4)
            f+=[f"v_fmac_f32 v{a+i}, v{CS+i}, v{NM+u}" for i in R]
            f+=[f"v_mul_f32 v{t+(i&3)}, v{a+i}, v{C1+u}" for i in R]
            f+=[f"v_exp_f32 v{t+(i&3)}, v{t+(i&3)}" for i in R]
            f+=[f"v_add_f32 v{t+(i&3)}, 1.0, v{t+(i&3)}" for i in R]
            f+=[f"v_rcp_f32 v{t+(i&3)}, v{t+(i&3)}" for i in R]
            f+=[f"v_mul_f32 v{a+i}, v{a+i}, v{t+(i&3)}" for i in R]
            f+=[f"v_cvt_pk_bf16_f32 v{PK+2*g}, v{a+4*g}, v{a+4*g+1}",f"v_cvt_pk_bf16_f32 v{PK+2*g+1}, v{a+4*g+2}, v{a+4*g+3}"]
            if g&1:
                s=g>>1
                f.append(("lg",f"ds_write_b128 v{waddr}, v[{PK+4*s}:{PK+4*s+3}] offset:{woff+s*1024}","HW"))
        return f
    def xch(a):
        f=[("lg",f"ds_write_b128 v{XW}, v[{a+16+4*g}:{a+16+4*g+3}] offset:{g*1024}","XW") for g in range(4)]
        f+=[("lgwait","XW"),"s_barrier"]
        f+=[("lg",f"ds_read_b128 v[{XT+4*g}:{XT+4*g+3}], v{XR} offset:{g*1024}","XRD") for g in range(4)]
        f+=[("lgwait","XRD")]
        f+=[f"v_add_f32 v{a+i}, v{a+i}, v{XT+i}" for i in range(16)]
        return f
    def outst(a,u,sbase,add):
        f=[f"v_mul_f32 v{a+i}, v{a+i}, v{RS+u}" for i in range(16)]
        f+=[f"v_cvt_pk_bf16_f32 v{PK+j}, v{a+2*j}, v{a+2*j+1}" for j in range(8)]
        f+=[f"s_add_u32 s31, {sbase}, {add}"]
        md=' sc1' if 'sc1' in X else (' nt' if 'nt' in X else '')
        if 'nost' not in X: f+=[("vm",f"buffer_store_dwordx4 v[{PK}:{PK+3}], v1, {LS}, s31 offen{md}",None),("vm",f"buffer_store_dwordx4 v[{PK+4}:{PK+7}], v1, {LS}, s31 offen offset:1024{md}",None),"s_nop 0"]
        return f
    full=list(range(36)); half=list(range(0,36,2)); ord0=list(range(24))+list(range(32,36))+list(range(24,32))
    LA=3
    def csnext(rnd): return [f"s_add_u32 s25, s24, {rnd*512}"]+cs_load("s25")
    pass
    st.tile((AX,AX+16),half,bjit=bjX,la=LA,boost=2,fillers=sf,fill_start=2); k.stamp(4)
    f=xch(AX)+[("vmwait","CS")]+silu(AX,0,HH,0)+csnext(0)
    st.tile((AY,AY+16),full,fillers=f,bjit=lambda u,kp: bjX(u,kp) if kp&1 else None,la=LA,fill_start=5); k.stamp(5)
    accs=[AX,AY]
    for rnd in range(1,4):
        prev=accs[rnd&1]; cur=accs[(rnd+1)&1]
        prev=AY if (rnd-1)%2==0 else AX
        cur=AX if (rnd-1)%2==0 else AY
        f=[("vmwait","CS")]+silu(prev,0,HW,(rnd-1)*8192)+silu(prev+16,1,HW+1,(rnd-1)*8192)+csnext(rnd)
        if rnd==3:
            f+=[("lgwait","HW"),"s_barrier"]
            for s in range(LA):
                for u in range(2): f.append(("lg",bjH(u,ord0[s]),("B",u,ord0[s])))
        st.tile((cur,cur+16),full,fillers=f,fill_start=5); k.stamp(5+rnd)
    f=[("vmwait","CS")]+silu(AX,0,HW,3*8192)+silu(AX+16,1,HW+1,3*8192)+[("lgwait","HW"),"s_barrier"]
    st.tile((AY,AY+16),ord0,fillers=f,bjit=bjH,la=LA,bpre=LA,flush_at=28,fill_start=5); k.stamp(9)
    f=outst(AY,0,"s28",0)+outst(AY+16,1,"s29",0)
    st.tile((AX,AX+16),half,fillers=f,fill_start=5)
    f=xch(AX)+outst(AX,0,"s30",0)
    st.tile((AY,AY+16),full,fillers=f,fill_start=5)
    f=outst(AY,0,"s28",8192)+outst(AY+16,1,"s29",8192)
    f+=[("call",lambda: k.code_prefetch("k1_qkv0_kernel","k2_attn_codeend",4,240)),("call",lambda: k.code_prefetch("k6_red0_kernel","k6_red_codeend",4,246))]
    st.tile((AX,AX+16),full,fillers=f,fill_start=5)
    f=outst(AX,0,"s28",2*8192)+outst(AX+16,1,"s29",2*8192)
    st.tile((AY,AY+16),full,fillers=f,fill_start=5)
    k.e("s_nop 10")
    for it in outst(AY,0,"s28",3*8192)+outst(AY+16,1,"s29",3*8192): st.place(it)
    k.stamp(10); k.stamp_dump()
    k.label(END); k.e("s_endpgm")
    return k,256,256,163840
```

```python
from asmlib import *
from layout import *
from k0 import fbits, ws_srd, srd, layer_srd
LS="s[44:47]"
def gen_k6():
    k=Kern("k6_red", nvgpr=64, nsgpr=64)
    k.aliases=[(f"k6_red{l}_kernel",[f"s_mov_b32 s34, {hex(l*LSTRIDE)}"]) for l in range(2)]
    B=CUR; END=k.name+"_end"
    k.e([f"s_cmp_ge_u32 s2, 256", f"s_cbranch_scc1 {END}",
         "s_load_dwordx2 s[4:5], s[0:1], 64","s_load_dwordx2 s[6:7], s[0:1], 48"]); k.stamp(0)
    k.e(["v_lshrrev_b32 v1, 6, v0","v_and_b32 v2, 63, v0","s_nop 0","v_readfirstlane_b32 s3, v1",
         "v_and_b32 v3, 7, v2",
         "v_lshrrev_b32 v4, 3, v0",
         "v_lshrrev_b32 v5, 1, v4","v_and_b32 v6, 1, v4",
         "s_lshr_b32 s12, s2, 2","s_and_b32 s13, s2, 3",
         "v_lshlrev_b32 v7, 10, v5","v_lshlrev_b32 v8, 5, v6","s_lshl_b32 s14, s13, 3","v_add_u32 v8, s14, v8","v_add_u32 v8, v8, v3","v_lshlrev_b32 v8, 4, v8","v_add_u32 v7, v7, v8",
         f"s_mul_i32 s15, s12, {AFB}",
         "s_waitcnt lgkmcnt(0)"]); k.stamp(1)
    layer_srd(k)
    k.e(f"s_add_u32 s16, s15, {B+L_X1}")
    k.e("buffer_load_dwordx4 v[12:15], v7, s[44:47], s16 offen")
    for s in range(8):
        k.e([f"s_add_u32 s16, s15, {B+L_PART+s*AF_SIZE}", f"buffer_load_dwordx4 v[{16+4*s}:{19+4*s}], v7, s[44:47], s16 offen"])
    A=48
    k.stamp(2)
    k.e("s_waitcnt vmcnt(8)"); k.stamp(3)
    for j in range(4): k.e([f"v_lshlrev_b32 v{A+2*j}, 16, v{12+j}", f"v_and_b32 v{A+2*j+1}, 0xffff0000, v{12+j}"])
    for s in range(8):
        k.e(f"s_waitcnt vmcnt({7-s})")
        for j in range(4):
            k.e([f"v_lshlrev_b32 v9, 16, v{16+4*s+j}", f"v_and_b32 v10, 0xffff0000, v{16+4*s+j}", f"v_add_f32 v{A+2*j}, v{A+2*j}, v9", f"v_add_f32 v{A+2*j+1}, v{A+2*j+1}, v10"])
    k.stamp(4)
    for j in range(4): k.e(f"v_cvt_pk_bf16_f32 v{56+j}, v{A+2*j}, v{A+2*j+1}")
    L0=k.name+"_l0"; FIN=k.name+"_fin"
    k.e(["s_cmp_eq_u32 s34, 0",f"s_cbranch_scc1 {L0}"])
    if True:
        srd(k,20,(6,7),S*D*2)
        k.e(["s_lshl_b32 s16, s12, 5","s_add_u32 s16, s16, s14","v_add_u32 v9, s16, v3","v_mul_u32_u24 v9, 1152, v9","v_lshlrev_b32 v10, 5, v5","v_add_u32 v9, v9, v10","v_lshlrev_b32 v10, 3, v6","v_add_u32 v9, v9, v10",
             "buffer_store_dwordx2 v[56:57], v9, s[20:23], 0 offen","buffer_store_dwordx2 v[58:59], v9, s[20:23], 0 offen offset:16",f"s_branch {FIN}"])
    k.label(L0)
    if True:
        k.e([f"s_add_u32 s16, s15, {B+L_X2}","buffer_store_dwordx4 v[56:59], v7, s[44:47], s16 offen"])
        for j in range(4): k.e([f"v_lshlrev_b32 v{A+2*j}, 16, v{56+j}", f"v_and_b32 v{A+2*j+1}, 0xffff0000, v{56+j}"])
        def reduce72(v,ldsoff):
            k.e(["s_nop 1",f"v_add_f32_dpp v{v}, v{v}, v{v} row_ror:8 row_mask:0xf bank_mask:0xf","s_nop 1",
                 f"v_mov_b32 v11, v{v}","s_nop 1",f"v_permlane16_swap_b32 v{v}, v11","s_nop 1",f"v_add_f32 v{v}, v{v}, v11",
                 f"v_mov_b32 v11, v{v}","s_nop 1",f"v_permlane32_swap_b32 v{v}, v11","s_nop 1",f"v_add_f32 v{v}, v{v}, v11",
                 "s_lshl_b32 s17, s3, 5","v_lshlrev_b32 v11, 2, v3","v_add_u32 v9, s17, v11",f"ds_write_b32 v9, v{v} offset:{ldsoff}","s_waitcnt lgkmcnt(0)","s_barrier"])
            for w in range(9): k.e(f"ds_read_b32 v{20+w}, v11 offset:{ldsoff+32*w}")
            k.e("s_waitcnt lgkmcnt(0)")
            k.e(f"v_add_f32 v{v}, v20, v21")
            for w in range(2,9): k.e(f"v_add_f32 v{v}, v{v}, v{20+w}")
        k.e(f"v_add_f32 v30, v{A}, v{A+1}")
        for i in range(2,8): k.e(f"v_add_f32 v30, v30, v{A+i}")
        reduce72(30,0)
        k.e(f"v_mul_f32 v30, {fbits(1.0/576)}, v30")
        for i in range(8): k.e(f"v_sub_f32 v{A+i}, v{A+i}, v30")
        k.e(f"v_mul_f32 v31, v{A}, v{A}")
        for i in range(1,8): k.e(f"v_fmac_f32 v31, v{A+i}, v{A+i}")
        reduce72(31,512)
        k.e([f"v_mov_b32 v32, {fbits(1e-5)}", f"v_fmac_f32 v32, {fbits(1.0/576)}, v31","v_rsq_f32 v32, v32","s_nop 0"])
        for i in range(8): k.e(f"v_mul_f32 v{A+i}, v{A+i}, v32")
        for j in range(4): k.e(f"v_cvt_pk_bf16_f32 v{60+j}, v{A+2*j}, v{A+2*j+1}")
        k.e([f"s_add_u32 s16, s15, {B+L_XN2}","buffer_store_dwordx4 v[60:63], v7, s[44:47], s16 offen"])
    k.label(FIN)
    k.stamp(5); k.stamp_dump()
    k.label(END); k.e("s_endpgm")
    return k,256,576,1024
```

```python
S=2048; D=576; H=32; DH=18; F=4608
AFB=36864
AF_SIZE=64*AFB
WS_SIZE=0x10000000
W12_WAVE=324*1024
WS_W12=0x0000000
WS_WQKV=0x0B00000
WQKV_WAVE=72*1024
WS_WO=0x0E00000
WS_CS1=0x0F00000
LSTRIDE=0x3000000
LAYER0=LSTRIDE
KVREC=2432
KV_HEAD=64*KVREC
L_Q1=0x0000000
L_Q2=0x0200000
L_KV=0x0300000
L_O=0x0800000
L_X1=0x0B00000
L_ST=0x0E00000
ST_TT=4608
L_PART=0x1000000
L_X2=0x2400000
L_XN2=0x2700000
def LB(layer): return LAYER0+layer*LSTRIDE
WS_X0=L_X2
WS_XN0=L_XN2
CUR=LSTRIDE
QSCALE=(DH**-0.5)*1.4426950408889634
def pi(hh,jj): return (jj&3)+8*(jj>>2)+4*hh
```

```python
import sys, importlib
from asmlib import *
from layout import *
import k0
HEADER=open('interleave_layers__mha_block__dense_activation_silu__prompt.s.ref').read().split('\n')
hdr=[l for l in HEADER if l.startswith(';') and '@launch' not in l and 'Override' not in l and 'grid=ceil' not in l]
hdr=hdr[:10]
import os
if os.environ.get('STAMPS'): Kern.STAMPS=True
def main(out, upto=99):
    kerns=[]; launches=[]
    def add(t, names=None):
        k,n,b,l=t
        if k not in kerns: kerns.append(k)
        launches.append((k.name,n,b,l))
    import k1,k2,k3,k45,k6
    K0=k0.gen_k0(); add(K0)
    gens=[k1.gen_k1(),k2.gen_k2(),k3.gen_k3(),k45.gen_k45(),k6.gen_k6()]
    for j,(k,n,b,l) in enumerate(gens): k.launch_idx=[1+j,6+j]
    for layer in range(2):
        for k,n,b,l in gens:
            if k not in kerns: kerns.append(k)
            launches.append((k.aliases[layer][0],n,b,l))
    bad=0
    for k in kerns:
        p=check_hazards(k.l,k.name)
        for x in p[:30]: print("HAZARD",x)
        bad+=len(p)
    txt=build_file(kerns,launches,hdr)
    for j,(k,n,b,l) in enumerate(gens):
        for lay in range(2): txt=txt.replace(f'LAUNCHOFF_{k.name}_{lay}',str((10-k.launch_idx[lay])*512))
    open(out,"w").write(txt)
    print("wrote",out,len(txt),"bytes; hazards:",bad, "launches:",[(l[0],l[1],l[2],l[3]) for l in launches])
if __name__=="__main__":
    main(sys.argv[1] if len(sys.argv)>1 else "interleave_layers__mha_block__dense_activation_silu__prompt.s")
```

```python
import re

class Kern:
    def __init__(self, name, nvgpr=256, nagpr=0, nsgpr=100):
        self.name=name; self.l=[]; self.vm=[]; self.lg=[]
        self.nvgpr=nvgpr; self.nagpr=nagpr; self.nsgpr=nsgpr
        self.tail=[]
        self._lab=0
    def e(self, s):
        if isinstance(s,(list,tuple)):
            for x in s: self.e(x)
        else:
            self.l.append(s)
    def c(self, s): self.l.append("; "+s)
    def label(self, s): self.l.append(s+":")
    def newlabel(self, base):
        self._lab+=1; return f"{self.name}_{base}_{self._lab}"
    STAMPS=False
    def stamp(self,i):
        if Kern.STAMPS:
            if i==0: self.e("s_memrealtime s[90:91]")
            self.e(f"s_memtime s[{64+2*i}:{65+2*i}]"); self.nstamp=max(getattr(self,'nstamp',0),i+1)
    def stamp_dump(self, wg=0):
        if not Kern.STAMPS: return
        self.nsgpr=100
        L=self.newlabel("nodump")
        self.e(["s_memrealtime s[92:93]","s_load_dwordx2 s[6:7], s[0:1], 56","s_waitcnt lgkmcnt(0)",
                "s_and_b32 s60, s2, 7","s_or_b32 s60, s60, s3","s_cmp_lg_u32 s60, 0",f"s_cbranch_scc1 {L}x","s_mov_b64 exec, 1",
                "v_mov_b32 v2, 0","s_not_b32 s60, s90","v_mov_b32 v3, s60","global_atomic_umax v2, v3, s[6:7] offset:496","v_mov_b32 v3, s92","global_atomic_umax v2, v3, s[6:7] offset:500","s_mov_b64 exec, -1",f"{L}x:",
                f"s_cmp_lg_u32 s2, {wg}",f"s_cbranch_scc1 {L}","s_mul_i32 s60, s3, 48","v_mov_b32 v2, s60"])
        for i in range(self.nstamp):
            self.e([f"s_sub_u32 s60, s{64+2*i}, s64",f"v_mov_b32 v3, s60",f"global_store_dword v2, v3, s[6:7] offset:{4*i}"])
        self.e(["s_sub_u32 s60, s92, s90","v_mov_b32 v3, s60","global_store_dword v2, v3, s[6:7] offset:44"])
        self.label(L)
    def vm_op(self, s, tag=None):
        self.e(s); self.vm.append(tag)
    def vm_need(self, tag):
        idx=[i for i,t in enumerate(self.vm) if t==tag]
        if not idx: return None
        return len(self.vm)-1-idx[-1]
    def vm_wait(self, tag):
        n=self.vm_need(tag)
        if n is None: return False
        assert n<=63, ("vmcnt too large", n, tag)
        self.e(f"s_waitcnt vmcnt({n})")
        self.vm=self.vm[len(self.vm)-n:] if n>0 else []
        return True
    def vm_wait_all(self):
        self.e("s_waitcnt vmcnt(0)"); self.vm=[]
    def lg_op(self, s, tag=None):
        self.e(s); self.lg.append(tag)
    def lg_need(self, tag):
        idx=[i for i,t in enumerate(self.lg) if t==tag]
        if not idx: return None
        return len(self.lg)-1-idx[-1]
    def lg_wait(self, tag):
        n=self.lg_need(tag)
        if n is None: return False
        if n>15: n=15
        self.e(f"s_waitcnt lgkmcnt({n})")
        self.lg=self.lg[len(self.lg)-n:] if n>0 else []
        return True
    def lg_wait_all(self):
        self.e("s_waitcnt lgkmcnt(0)"); self.lg=[]
    aliases=None
    def entries(self): return [a[0] for a in self.aliases] if self.aliases else [self.name]
    def code_prefetch(self, start, end, nw, vtmp, stmp=(50,51,52), wave="s3", tag=None):
        L=self.newlabel("pc"); a,b,c=stmp
        self.e([f"s_getpc_b64 s[{a}:{a+1}]"]); self.label(L)
        self.e([f"s_add_u32 s{a}, s{a}, {start}-{L}", f"s_addc_u32 s{a+1}, s{a+1}, ({start}-{L})>>32",
                f"s_lshr_b32 s{c}, s2, 3", f"s_and_b32 s{c}, s{c}, 31", f"s_mul_i32 s{c}, s{c}, {nw}", f"s_add_u32 s{c}, s{c}, {wave}", f"s_lshl_b32 s{c}, s{c}, 10",
                f"s_min_u32 s{c}, s{c}, {end}-{start}-1024",
                f"v_lshlrev_b32 v{vtmp}, 4, v0", f"v_add_u32 v{vtmp}, s{c}, v{vtmp}"])
        self.vm_op(f"global_load_dwordx4 v[{vtmp+2}:{vtmp+5}], v{vtmp}, s[{a}:{a+1}]", tag)
    def offt_start(self, idx_expr_lines, slot_sgpr):
        pass
    def text(self):
        import os
        sm=os.environ.get("STMOD","sc1")
        which=os.environ.get("STK","k1")
        if sm and (not which or any(w in self.name for w in which.split(","))):
            self.l=[(x+" "+sm if x.startswith("buffer_store") and " sc1" not in x and " nt" not in x else x) for x in self.l]
        o=[]
        if self.aliases:
            for ai,(nm,setup) in enumerate(self.aliases):
                extra=[]
                if os.environ.get("OFFT"):
                    li=self.launch_idx[ai]
                    extra=["s_cmp_lg_u32 s2, 0",f"s_cbranch_scc1 {nm}_nt","s_load_dwordx2 s[60:61], s[0:1], 56","s_memrealtime s[62:63]","s_waitcnt lgkmcnt(0)",
                           f"s_add_u32 s60, s60, {(10-li)*512}","s_addc_u32 s61, s61, 0","v_mov_b32 v250, 0" if self.nvgpr>250 else "v_mov_b32 v60, 0",
                           ("v_mov_b32 v251, s62" if self.nvgpr>250 else "v_mov_b32 v61, s62"),
                           (f"global_store_dword v250, v251, s[60:61] offset:{4*li}" if self.nvgpr>250 else f"global_store_dword v60, v61, s[60:61] offset:{4*li}"),f"{nm}_nt:"]
                o+=[f".globl {nm}",".p2align 8",f".type {nm},@function",f"{nm}:"]+["  "+x if not x.endswith(":") else x for x in extra+setup]+[f"  s_branch {self.name}_body"]
            o+=[".p2align 6",f"{self.name}_body:"]
        else:
            o=[f".globl {self.name}",".p2align 8",f".type {self.name},@function",f"{self.name}:"]
        for x in self.l:
            if x.endswith(":") or x.startswith(";") or x.startswith("."): o.append(x)
            else: o.append("  "+x)
        o+=self.tail
        o.append(f"{self.name}_codeend:")
        return "\n".join(o)
    def desc(self):
        tot=self.nvgpr+self.nagpr
        acc=(self.nvgpr+3)//4*4
        if self.nagpr: tot=acc+self.nagpr
        out=[]
        for nm in self.entries():
            out+=[".p2align 6",f".amdhsa_kernel {nm}",
            f"  .amdhsa_next_free_vgpr {tot}",f"  .amdhsa_next_free_sgpr {self.nsgpr}",f"  .amdhsa_accum_offset {acc}",
            "  .amdhsa_group_segment_fixed_size 0","  .amdhsa_kernarg_size 72","  .amdhsa_user_sgpr_count 2",
            "  .amdhsa_user_sgpr_kernarg_segment_ptr 1","  .amdhsa_system_sgpr_workgroup_id_x 1",
            "  .amdhsa_float_denorm_mode_32 3",".end_amdhsa_kernel"]
        return "\n".join(out)

_reg_re=re.compile(r'^(-?)(\|?)(abs\()?([vas])(\d+|\[(\d+):(\d+)\])')
def regs_of(op):
    op=op.strip()
    if op in("vcc","exec","m0","scc"): return [("s",op)]
    if op in ("vcc_lo","vcc_hi"): return [("s","vcc")]
    m=_reg_re.match(op)
    if not m: return []
    k=m.group(4)
    if m.group(6) is not None:
        return [(k,i) for i in range(int(m.group(6)),int(m.group(7))+1)]
    return [(k,int(m.group(5)))]
TRANS=("v_exp_","v_log_","v_rcp_","v_rsq_","v_sqrt_","v_sin_","v_cos_")
def split_ops(rest):
    ops=[];d=0;cur=""
    for ch in rest:
        if ch=="[":d+=1
        if ch=="]":d-=1
        if ch=="," and d==0: ops.append(cur.strip());cur=""
        else: cur+=ch
    if cur.strip(): ops.append(cur.strip())
    out=[]
    for o in ops:
        out.append(o.split()[0] if o.split() else o)
    return out
def parse(line):
    line=line.split(";")[0].strip()
    if not line or line.endswith(":") or line.startswith("."): return None
    p=line.split(None,1); mn=p[0]; ops=split_ops(p[1]) if len(p)>1 else []
    d=dict(mn=mn,w=[],r=[],kind="other",line=line,states=1)
    R=lambda i: regs_of(ops[i]) if i<len(ops) else []
    if mn=="s_nop": d["states"]=int(ops[0],0)+1; d["kind"]="nop"; return d
    if mn.startswith("v_mfma"):
        d["kind"]="mfma"; d["w"]=R(0); d["A"]=R(1); d["B"]=R(2); d["C"]=R(3); d["r"]=d["A"]+d["B"]+d["C"]
        d["passes"]= 16 if ("_2b_" in mn or "32x32x2_f32" in mn) else (8 if "32x32" in mn else 4)
        return d
    if mn.startswith("v_"):
        d["kind"]="trans" if mn.startswith(TRANS) else "valu"
        if mn.startswith("v_cmp"):
            d["w"]=R(0); d["r"]=sum((R(i) for i in range(1,len(ops))),[])
            if mn.startswith("v_cmpx"): d["w"]=d["w"]+[("s","exec")]
        elif mn.startswith("v_readfirstlane") or mn.startswith("v_readlane"):
            d["w"]=R(0); d["r"]=sum((R(i) for i in range(1,len(ops))),[]); d["lane"]=True
        elif mn.startswith("v_permlane"):
            d["w"]=R(0)+R(1); d["r"]=R(0)+R(1); d["perm"]=True
        else:
            d["w"]=R(0); d["r"]=sum((R(i) for i in range(1,len(ops))),[])
            if mn.startswith(("v_fmac","v_dot2c","v_mac","v_pk_fmac")): d["r"]+=R(0)
            if "_co_" in mn and len(ops)>1 and ops[1] in("vcc",) : d["w"]+= [("s","vcc")]
            if mn.startswith("v_cndmask") and len(ops)==3: d["r"]+=[("s","vcc")]
            if "dpp" in mn or "row_" in line or "quad_perm" in line: d["dpp"]=True
            if "sdwa" in mn and "UNUSED_PRESERVE" in line: d["r"]+=R(0)
        return d
    if mn.startswith(("buffer_","global_")):
        d["kind"]="vmem"
        lds=" lds" in (" "+line) and mn.startswith("buffer_load") or "load_lds" in mn
        if mn.startswith("buffer_load") and not lds:
            d["w"]=R(0); d["r"]=sum((R(i) for i in range(1,len(ops))),[])
        elif mn.startswith("global_load") and not lds:
            d["w"]=R(0); d["r"]=sum((R(i) for i in range(1,len(ops))),[])
        else:
            d["r"]=sum((R(i) for i in range(0,len(ops))),[])
            if lds: d["r"]+=[("s","m0")]; d["dma"]=True
            if mn.startswith("buffer_store"): d["sdata"]=R(0); d["wide"]=("x4" in mn or "x3" in mn)
            if mn.startswith("global_store"): d["sdata"]=R(1); d["wide"]=("x4" in mn or "x3" in mn)
        return d
    if mn.startswith("ds_"):
        d["kind"]="ds"
        if mn.startswith(("ds_read","ds_bpermute","ds_permute","ds_swizzle")):
            d["w"]=R(0); d["r"]=sum((R(i) for i in range(1,len(ops))),[])
        else:
            d["r"]=sum((R(i) for i in range(0,len(ops))),[])
        return d
    if mn.startswith("s_"):
        d["kind"]="salu"
        if mn.startswith(("s_cmp","s_cbranch","s_branch","s_waitcnt","s_barrier","s_endpgm","s_setprio","s_bitcmp")):
            d["r"]=sum((R(i) for i in range(0,len(ops))),[])
        else:
            d["w"]=R(0); d["r"]=sum((R(i) for i in range(1,len(ops))),[])
            if "saveexec" in mn: d["w"]+=[("s","exec")]
        return d
    return d
def check_hazards(lines, name=""):
    ins=[p for p in (parse(l) for l in lines) if p]
    probs=[]
    for x in ins:
        m=re.search(r'offset:(\d+)',x["line"])
        if m:
            o=int(m.group(1))
            if x["mn"].startswith("buffer_") and o>4095: probs.append(f"{name}: MUBUF offset too large: {x['line']}")
            if x["mn"].startswith("global_") and o>4095: probs.append(f"{name}: global offset too large: {x['line']}")
            if x["mn"].startswith("ds_") and o>65535: probs.append(f"{name}: DS offset too large: {x['line']}")
    pos=[];t=0
    for x in ins: pos.append(t); t+=x["states"]
    lastw={}
    lastCread={}
    laststore={}
    def dist(i,j):
        return pos[j]-pos[i]-ins[i]["states"]
    for j,x in enumerate(ins):
        k=x["kind"]
        isvalu=k in("valu","trans")
        for r in x["r"]:
            if r not in lastw: continue
            i=lastw[r]; p=ins[i]; d=dist(i,j); need=0
            pk=p["kind"]
            if pk in("valu","trans"):
                if k=="mfma" and r[0] in "va": need=2
                if pk=="trans" and k in("valu",) and r[0]=="v": need=max(need,1)
                if pk=="trans" and k=="mfma": need=2
                if x.get("lane") and r[0]=="v": need=max(need,1)
                if x.get("perm") and r[0]=="v": need=max(need,2)
                if x.get("dpp") and r[0]=="v": need=max(need,2)
                if r[0]=="s" and r[1]!="exec":
                    if isvalu: need=max(need,2)
                    if k=="vmem": need=max(need,5)
                    if x.get("lane"): need=max(need,4)
                if r==("s","exec") and x.get("dpp"): need=max(need,5)
            if p["mn"].startswith("v_dot") and x["mn"]!=p["mn"] and r[0]=="v": need=max(need,3)
            if pk=="mfma":
                P=p["passes"]; big={4:8,8:12,16:20,2:5}[P]
                if k=="mfma":
                    if r in x["C"] and r not in x["A"] and r not in x["B"]:
                        same=(x["C"]==p["w"] and x["passes"]==P)
                        need=0 if same else {4:6,8:10,16:18}[P]
                    else: need=big
                elif k in("valu","trans","vmem","ds"): need=big
            if pk=="salu" and r==("s","m0") and x.get("dma"): need=1
            if d<need: probs.append(f"{name}: RAW {r} need {need} have {d}: [{p['line']}] -> [{x['line']}]")
        for r in x["w"]:
            if r in lastw:
                i=lastw[r]; p=ins[i]; d=dist(i,j)
                if p["kind"]=="mfma":
                    P=p["passes"]; big={4:8,8:12,16:20}[P]
                    if k in("valu","trans","vmem","ds") and d<big:
                        probs.append(f"{name}: WAW {r} need {big} have {d}: [{p['line']}] -> [{x['line']}]")
                    if k=="mfma" and not (r in x["C"]) and d<{4:6,8:10,16:18}[P]:
                        probs.append(f"{name}: WAW(mfma) {r} have {d}: [{p['line']}] -> [{x['line']}]")
            if r in lastCread and isvalu:
                i=lastCread[r]; P=ins[i]["passes"]; need={4:3,8:7,16:15}[P]; d=dist(i,j)
                if d<need: probs.append(f"{name}: WAR-C {r} need {need} have {d}: [{ins[i]['line']}] -> [{x['line']}]")
            if r in laststore and isvalu:
                i=laststore[r]; d=dist(i,j)
                if d<2: probs.append(f"{name}: store-data WAR {r} have {d}: [{ins[i]['line']}] -> [{x['line']}]")
        if k=="mfma":
            for r in x["C"]: lastCread[r]=j
        if x.get("wide"):
            for r in x["sdata"]: laststore[r]=j
        for r in x["w"]: lastw[r]=j
    return probs

def build_file(kerns, launches, header_comment):
    o=[]
    o+=header_comment
    for (k,grid,block,lds) in launches:
        o.append(f"; @launch kernel={k} grid=({grid},1,1) block=({block},1,1) lds={lds}")
    o.append('.amdgcn_target "amdgcn-amd-amdhsa--gfx950"')
    o.append(".text")
    for k in kerns: o.append(k.text())
    o.append('.section .rodata,"a"')
    for k in kerns: o.append(k.desc())
    return "\n".join(o)+"\n"
```

```python
from asmlib import *
TRANSP=("v_exp_","v_log_","v_rcp_","v_rsq_","v_sqrt_")
def cost(item):
    if isinstance(item,str):
        if item.startswith(TRANSP): return 8
        if item.startswith(";"): return 0
        if item.startswith("s_nop"): return 4*(int(item.split()[1])+1)
        return 4
    if item[0] in("vm","lg"): return 4
    if item[0] in("vmwait","lgwait"): return 4
    if item[0]=="call": return 0
    return 4
class Stream:
    def __init__(self,k,ring,R,total,srd="s[8:11]",voff="v1",soff="s20",btail=None,nt=""):
        self.k=k; self.ring=ring; self.R=R; self.total=total; self.srd=srd; self.voff=voff; self.soff=soff
        self.n=0
        self.issued=0
        self.btail=btail
        self.mod=nt
        self.free=[ring+4*i for i in range(R)]
        self.where={}
    def add_quads(self,regs): self.free+=list(regs)
    NU=2; ACCW=16; MF="v_mfma_f32_32x32x16_bf16"
    def breg(self,u,kap):
        b=kap*self.NU+u
        if b<64: return f"a[{4*b}:{4*b+3}]"
        r=self.btail+4*(b-64); return f"v[{r}:{r+3}]"
    def slot(self,n):
        r=self.where[n]; return f"v[{r}:{r+3}]"
    def can_issue(self): return self.issued<self.total and len(self.free)>0
    def issue(self):
        n=self.issued
        if n>=self.total: return
        k=self.k
        if not self.free: return
        self.where[n]=self.free.pop(0)
        if n%4==0 and n>0: k.e(f"s_add_u32 {self.soff}, {self.soff}, 4096")
        off=(n%4)*1024
        vo=self.voff_fn(n) if getattr(self,"voff_fn",None) else self.voff
        k.vm_op(f"buffer_load_dwordx4 {self.slot(n)}, {vo}, {self.srd}, {self.soff} offen offset:{off}{self.mod}", ("A",n))
        self.issued+=1
    def save(self): return (list(self.k.vm),list(self.k.lg),self.n,self.issued,list(self.free),dict(self.where))
    def restore(self,sv): self.k.vm,self.k.lg,self.n,self.issued,self.free,self.where=list(sv[0]),list(sv[1]),sv[2],sv[3],list(sv[4]),dict(sv[5])
    def prefetch(self,cnt=None):
        for _ in range(self.R if cnt is None else cnt): self.issue()
    def place(self,item):
        k=self.k
        if isinstance(item,str): k.e(item)
        elif item[0]=="vm": k.vm_op(item[1],item[2])
        elif item[0]=="lg": k.lg_op(item[1],item[2])
        elif item[0]=="vmwait": k.vm_wait(item[1])
        elif item[0]=="lgwait":
            if item[1] is None: k.lg_wait_all()
            else: k.lg_wait(item[1])
        elif item[0]=="call": item[1]()
        else: raise ValueError(item)
    def tile(self,acc,kaps,fillers=(),swap=False,cinit=(False,False,False,False),bjit=None,la=3,fill_start=4,budget=24,
             at=None,bpre=0,flush_at=None,us=(0,1),post=None,boost=0,post_tail=(),hold=0,burst=0,flushpost=False):
        k=self.k; fill=list(fillers); at=at or {}
        nsteps=len(kaps); gap=0
        def jit(s):
            if bjit is None or s>=nsteps: return
            for u in us:
                ins=bjit(u,kaps[s])
                if ins: k.lg_op(ins,("B",u,kaps[s]))
        if bjit is not None:
            for s in range(bpre,min(la,nsteps)): jit(s)
        carry=[0]
        def dofill(b):
            b+=carry[0]
            while fill and b>0:
                c=cost(fill[0])
                if c>b+2 and b<budget-6 and budget>=16: break
                self.place(fill.pop(0)); b-=c
            carry[0]=min(b,0) if budget>=16 else max(min(b,budget),-16)
        for s,kap in enumerate(kaps):
            n=self.n
            if s in at:
                for it in at[s]: self.place(it)
            if k.vm_need(("A",n)) is not None:
                tgt=("A",n+1) if (n+1<self.issued and s+1<nsteps and k.vm_need(("A",n+1)) is not None and k.vm_need(("A",n+1))>=12) else ("A",n)
                k.vm_wait(tgt)
            if bjit is not None:
                for u in reversed(us):
                    if k.lg_need(("B",u,kap)) is not None: k.lg_wait(("B",u,kap)); break
            for u in us:
                a=acc[u]; W=self.ACCW; C=f"v[{a}:{a+W-1}]" if (s>0 or cinit[u]) else "0"
                A=self.slot(n); B=self.breg(u,kap)
                if swap: A,B=B,A
                k.e(f"{self.MF} v[{a}:{a+W-1}], {A}, {B}, {C}")
                b=budget
                if u==us[-1]:
                    pre=len(k.l)
                    self.free.append(self.where[self.n])
                    self.n+=1
                    if s>=hold-1:
                        self.issue()
                        for _ in range(boost): self.issue()
                        if s==hold-1:
                            for _ in range(burst): self.issue()
                    if post and s in post:
                        if flushpost:
                            while fill: self.place(fill.pop(0))
                        for it in post[s]: self.place(it)
                    if flush_at is not None and s+la==flush_at:
                        while fill: self.place(fill.pop(0))
                    if s+la>=bpre: jit(s+la)
                    b-=4*(len(k.l)-pre)
                if gap>=fill_start: dofill(b)
                gap+=1
        while fill: self.place(fill.pop(0))
        for it in post_tail: self.place(it)
```

```python
from asmlib import *
from layout import *
import struct
def fbits(x): return "0x%08x"%struct.unpack("<I",struct.pack("<f",x))[0]

def ws_srd(k, d=8, ptr=(4,5)):
    k.e([f"s_mov_b32 s{d}, s{ptr[0]}", f"s_mov_b32 s{d+1}, s{ptr[1]}", f"s_mov_b32 s{d+2}, {hex(WS_SIZE)}", f"s_mov_b32 s{d+3}, 0x20000"])
def layer_srd(k, d=44, ptr=(4,5), off="s34"):
    k.e([f"s_add_u32 s{d}, s{ptr[0]}, {off}", f"s_addc_u32 s{d+1}, s{ptr[1]}, 0", f"s_mov_b32 s{d+2}, {hex(2*LSTRIDE)}", f"s_mov_b32 s{d+3}, 0x20000"])
def layer_aliases(k, base):
    k.aliases=[(f"{base}{l}_kernel",[f"s_mov_b32 s34, {hex(l*LSTRIDE)}"]) for l in range(2)]
def srd(k, d, ptr, size):
    k.e([f"s_mov_b32 s{d}, s{ptr[0]}", f"s_mov_b32 s{d+1}, s{ptr[1]}", f"s_mov_b32 s{d+2}, {hex(size)}", f"s_mov_b32 s{d+3}, 0x20000"])

def cross_half_add(k, v, t):
    k.e([f"v_mov_b32 v{t}, v{v}", "s_nop 1", f"v_permlane32_swap_b32 v{v}, v{t}", "s_nop 1", f"v_add_f32 v{v}, v{v}, v{t}"])

def ln_tile_task(k, layer_tag):
    pass

NWG0=64+72+72+9+64+32
import os
ROT='rot' in os.environ.get('X45','').split('_')
def gen_k0():
    k=Kern("k0_prep_kernel", nvgpr=128, nsgpr=64)
    END="k0_end"
    k.e([f"s_cmp_ge_u32 s2, {NWG0}", f"s_cbranch_scc1 {END}"])
    if os.environ.get("OFFT"):
        k.nsgpr=100
        k.e(["s_cmp_lg_u32 s2, 0","s_cbranch_scc1 k0_nt","s_load_dwordx2 s[60:61], s[0:1], 56","s_memrealtime s[62:63]","s_waitcnt lgkmcnt(0)","s_add_u32 s60, s60, 5120","s_addc_u32 s61, s61, 0","v_mov_b32 v60, 0","v_mov_b32 v61, s62","global_store_dword v60, v61, s[60:61]","k0_nt:"])
    k.e(["s_load_dwordx2 s[4:5], s[0:1], 64",
         "s_load_dwordx2 s[12:13], s[0:1], 0",
         "s_load_dwordx2 s[16:17], s[0:1], 8",
         "s_load_dwordx2 s[20:21], s[0:1], 16",
         "s_load_dwordx2 s[24:25], s[0:1], 32",
         "s_load_dwordx2 s[28:29], s[0:1], 40",
         "v_lshrrev_b32 v1, 6, v0", "v_and_b32 v0, 63, v0", "s_nop 0", "v_readfirstlane_b32 s3, v1",
         ]); k.stamp(0)
    k.e("s_waitcnt lgkmcnt(0)"); k.stamp(1)
    ws_srd(k,8,(4,5))
    k.e(["v_lshlrev_b32 v1, 4, v0",
         "v_and_b32 v2, 31, v0",
         "v_lshrrev_b32 v3, 5, v0",
         "v_mov_b32 v4, 0x3f803f80"])
    k.e(["s_cmp_lt_u32 s2, 64","s_cbranch_scc1 k0_x",
         "s_cmp_lt_u32 s2, 217","s_cbranch_scc1 k0_w",
         "s_cmp_lt_u32 s2, 281","s_cbranch_scc1 k0_qkv"])
    k.e(["s_getpc_b64 s[50:51]"]); k.label("k0_pc")
    k.e(["s_add_u32 s50, s50, k1_qkv0_kernel-k0_pc","s_addc_u32 s51, s51, (k1_qkv0_kernel-k0_pc)>>32",
         "s_sub_u32 s52, s2, 281","s_lshr_b32 s52, s52, 3","s_lshl_b32 s52, s52, 2","s_add_u32 s52, s52, s3","s_lshl_b32 s52, s52, 10"])
    for j in range(4):
        k.e([f"s_add_u32 s53, s52, {j*16384}","s_min_u32 s53, s53, k6_red_codeend-k1_qkv0_kernel-1024","v_add_u32 v5, s53, v1",f"global_load_dwordx4 v[{8+4*j}:{11+4*j}], v5, s[50:51]"])
    k.e(f"s_branch {END}")
    k.label("k0_x")
    srd(k,36,(12,13),S*D*2)
    k.e(["s_lshl_b32 s14, s2, 5","v_add_u32 v5, s14, v2","s_movk_i32 s15, 1152","v_mul_lo_u32 v5, v5, s15","v_lshlrev_b32 v6, 3, v3","v_add_u32 v5, v5, v6",
         "s_lshl_b32 s18, s3, 5"])
    X=16
    for m in range(9):
        k.e(f"s_add_u32 s19, s18, {m*128}")
        k.e(f"buffer_load_dwordx2 v[{X+4*m}:{X+4*m+1}], v5, s[36:39], s19 offen")
        k.e(f"buffer_load_dwordx2 v[{X+4*m+2}:{X+4*m+3}], v5, s[36:39], s19 offen offset:16")
    k.e([f"s_mul_i32 s22, s2, {AFB}","s_lshl_b32 s23, s3, 10","s_add_u32 s22, s22, s23"])
    k.stamp(2)
    k.e(["s_waitcnt vmcnt(0)"]); k.stamp(3)
    k.e(["v_lshrrev_b32 v6, 4, v2","v_mul_u32_u24 v6, 18432, v6","v_and_b32 v7, 15, v2","v_lshlrev_b32 v8, 4, v3","v_add_u32 v7, v7, v8","v_lshlrev_b32 v7, 4, v7","v_add_u32 v6, v6, v7",
         f"s_mul_i32 s26, s2, {AFB}","s_lshr_b32 s27, s3, 1","s_lshl_b32 s27, s27, 10","s_add_u32 s26, s26, s27","s_and_b32 s27, s3, 1","s_lshl_b32 s27, s27, 3","s_add_u32 s26, s26, s27",f"s_add_u32 s26, s26, {WS_X0}"])
    k.e(["v_mov_b32 v7, 0"])
    for m in range(9):
        k.e(f"buffer_store_dwordx2 v[{X+4*m}:{X+4*m+1}], v6, s[8:11], s26 offen")
        k.e(f"buffer_store_dwordx2 v[{X+4*m+2}:{X+4*m+3}], v6, s[8:11], s26 offen offset:512")
        k.e("s_add_u32 s26, s26, 2048")
        for j in range(4): k.e(f"v_dot2c_f32_bf16 v7, v{X+4*m+j}, v4")
    k.e("s_nop 2")
    cross_half_add(k,7,8)
    k.e(["v_lshlrev_b32 v9, 2, v2","s_lshl_b32 s23, s3, 7","v_add_u32 v10, s23, v9","ds_write_b32 v10, v7","s_waitcnt lgkmcnt(0)","s_barrier",
         "ds_read_b32 v11, v9","ds_read_b32 v12, v9 offset:128","ds_read_b32 v13, v9 offset:256","ds_read_b32 v14, v9 offset:384","s_waitcnt lgkmcnt(0)",
         "v_add_f32 v11, v11, v12","v_add_f32 v13, v13, v14","v_add_f32 v11, v11, v13",f"v_mul_f32 v11, {fbits(1.0/576)}, v11"])
    k.stamp(4)
    Y=52
    k.e("v_mov_b32 v7, 0")
    for i in range(36):
        k.e([f"v_lshlrev_b32 v{Y+2*i}, 16, v{X+i}", f"v_and_b32 v{Y+2*i+1}, 0xffff0000, v{X+i}",
             f"v_sub_f32 v{Y+2*i}, v{Y+2*i}, v11", f"v_sub_f32 v{Y+2*i+1}, v{Y+2*i+1}, v11",
             f"v_fmac_f32 v7, v{Y+2*i}, v{Y+2*i}", f"v_fmac_f32 v7, v{Y+2*i+1}, v{Y+2*i+1}"])
    cross_half_add(k,7,8)
    k.e(["ds_write_b32 v10, v7 offset:512","s_waitcnt lgkmcnt(0)","s_barrier",
         "ds_read_b32 v12, v9 offset:512","ds_read_b32 v13, v9 offset:640","ds_read_b32 v14, v9 offset:768","ds_read_b32 v15, v9 offset:896","s_waitcnt lgkmcnt(0)",
         "v_add_f32 v12, v12, v13","v_add_f32 v14, v14, v15","v_add_f32 v12, v12, v14",
         f"v_mov_b32 v13, {fbits(1e-5)}", f"v_fmac_f32 v13, {fbits(1.0/576)}, v12","v_rsq_f32 v13, v13","s_nop 1"])
    k.stamp(5)
    for i in range(36):
        k.e([f"v_mul_f32 v{Y+2*i}, v{Y+2*i}, v13", f"v_mul_f32 v{Y+2*i+1}, v{Y+2*i+1}, v13", f"v_cvt_pk_bf16_f32 v{X+i}, v{Y+2*i}, v{Y+2*i+1}"])
    for m in range(9):
        k.e(f"s_add_u32 s19, s22, {WS_XN0+m*4096}")
        k.e(f"buffer_store_dwordx4 v[{X+4*m}:{X+4*m+3}], v1, s[8:11], s19 offen")
    k.e(f"s_branch {END}")
    k.label("k0_w")
    if 'now' in os.environ.get('X0',''): k.e(f"s_branch {END}")
    k.e(["v_lshrrev_b32 v5, 3, v0","v_and_b32 v6, 7, v0","v_lshlrev_b32 v6, 4, v6",
         "s_mul_i32 s30, s3, 18432",
         "v_lshrrev_b32 v8, 2, v0","v_and_b32 v8, 3, v8",
         "v_lshlrev_b32 v9, 2, v3","v_add_u32 v8, v8, v9","v_lshlrev_b32 v8, 7, v8",
         "v_lshrrev_b32 v9, 4, v0","v_and_b32 v9, 1, v9","v_lshlrev_b32 v9, 5, v9","v_add_u32 v8, v8, v9",
         "v_and_b32 v9, 3, v0","v_lshlrev_b32 v9, 3, v9","v_add_u32 v8, v8, v9","v_add_u32 v7, s30, v8"])
    k.e(["s_cmp_lt_u32 s2, 136","s_cbranch_scc1 k0_w1","s_cmp_lt_u32 s2, 208","s_cbranch_scc1 k0_w2","s_branch k0_wo"])
    def process_units(k, dst_calc, colsum=False):
        k.e("s_waitcnt vmcnt(0)")
        if colsum: k.e(["v_mov_b32 v12, 0","v_mov_b32 v13, 0"])
        for m in range(9):
            for f in range(2):
                b=16+8*(m%2)*2+f*8
                b=16+((2*m+f)%8)*4
                k.e(f"ds_read_b64_tr_b16 v[{b}:{b+1}], v7 offset:{m*2048+f*64}")
                k.e(f"ds_read_b64_tr_b16 v[{b+2}:{b+3}], v7 offset:{m*2048+f*64+1024}")
                dst_calc(m,f)
                k.e("s_waitcnt lgkmcnt(0)")
                k.e(f"buffer_store_dwordx4 v[{b}:{b+3}], v1, s[8:11], s19 offen")
                if colsum:
                    for j in range(4): k.e(f"v_dot2c_f32_bf16 v{12+f}, v{b+j}, v4")
    def tr16_addr():
        k.e(["s_mul_i32 s31, s3, 20480","v_lshrrev_b32 v15, 4, v0","v_lshlrev_b32 v15, 2, v15","v_lshrrev_b32 v16, 2, v0","v_and_b32 v16, 3, v16","v_add_u32 v15, v15, v16","v_lshlrev_b32 v15, 7, v15",
             "v_and_b32 v16, 3, v0","v_lshlrev_b32 v16, 3, v16","v_add_u32 v15, v15, v16","v_add_u32 v17, s31, v15"])
    k.label("k0_w1")
    srd(k,36,(24,25),D*F*2)
    tr16_addr()
    k.e(["s_sub_u32 s14, s2, 64","s_movk_i32 s15, 9216","v_mul_lo_u32 v10, v5, s15","v_add_u32 v10, v10, v6",
         "s_lshl_b32 s18, s14, 7","s_mul_i32 s19, s3, %d"%(32*9216),"s_add_u32 s18, s18, s19",
         "s_mov_b32 s26, s31","s_mov_b32 s23, s3"])
    k.label("k0_w1l")
    for q in range(4):
        k.e([f"s_add_u32 m0, s26, {q*1024}",f"s_add_u32 s19, s18, {q*8*9216}","buffer_load_dwordx4 v10, s[36:39], s19 offen lds"])
    k.e(["s_add_u32 s26, s26, 4096","s_add_u32 s18, s18, %d"%(128*9216),"s_add_u32 s23, s23, 4","s_cmp_lt_u32 s23, 18","s_cbranch_scc1 k0_w1l"])
    assert all((cb*57>>9)==cb//9 for cb in range(72))
    k.e(["s_mul_i32 s22, s14, 57","s_lshr_b32 s22, s22, 9","s_mul_i32 s23, s22, 9","s_sub_u32 s23, s14, s23",
         f"s_mul_i32 s26, s22, {4*W12_WAVE}","s_mul_i32 s27, s23, 18432","s_add_u32 s26, s26, s27",f"s_add_u32 s26, s26, {WS_W12}",
         "s_and_b32 s28, s22, 1" if ROT else "s_mov_b32 s28, 0","s_mul_i32 s28, s28, 9",
         "v_mov_b32 v40, 0","v_mov_b32 v41, 0","v_mov_b32 v42, 0","v_mov_b32 v43, 0","s_mov_b32 s27, s3","s_waitcnt vmcnt(0)"])
    k.label("k0_w1p")
    for f in range(4):
        k.e([f"ds_read_b64_tr_b16 v[{20+4*f}:{21+4*f}], v17 offset:{f*32}",f"ds_read_b64_tr_b16 v[{22+4*f}:{23+4*f}], v17 offset:{f*32+2048}"])
    k.e("s_waitcnt lgkmcnt(0)")
    k.e(["s_add_u32 s29, s27, s28","s_sub_u32 s33, s29, 18","s_cmp_ge_u32 s29, 18","s_cselect_b32 s29, s33, s29","s_lshl_b32 s29, s29, 10","s_add_u32 s29, s29, s26"])
    for f in range(4):
        k.e([f"s_add_u32 s19, s29, {f*W12_WAVE}",f"buffer_store_dwordx4 v[{20+4*f}:{23+4*f}], v1, s[8:11], s19 offen"])
        for j in range(4): k.e(f"v_dot2c_f32_bf16 v{40+f}, v{20+4*f+j}, v4")
    k.e(["v_add_u32 v17, 4096, v17","s_add_u32 s27, s27, 4","s_cmp_lt_u32 s27, 18","s_cbranch_scc1 k0_w1p","s_nop 2"])
    for f in range(4):
        k.e([f"v_mov_b32 v44, v{40+f}","s_nop 1",f"v_permlane16_swap_b32 v{40+f}, v44","s_nop 1",f"v_add_f32 v{40+f}, v{40+f}, v44"])
        cross_half_add(k,40+f,44)
    k.e(["v_lshrrev_b32 v45, 4, v0","v_cmp_eq_u32 vcc, 1, v45","s_nop 1","v_cndmask_b32 v40, v40, v41, vcc","v_cmp_eq_u32 vcc, 2, v45","s_nop 1","v_cndmask_b32 v40, v40, v42, vcc","v_cmp_eq_u32 vcc, 3, v45","s_nop 1","v_cndmask_b32 v40, v40, v43, vcc",
         "v_lshlrev_b32 v14, 2, v0","v_add_u32 v15, s31, v14","s_waitcnt vmcnt(0)","ds_write_b32 v15, v40","s_waitcnt lgkmcnt(0)","s_barrier",
         "s_cmp_lg_u32 s3, 0",f"s_cbranch_scc1 {END}",
         "ds_read_b32 v16, v14","ds_read_b32 v17, v14 offset:20480","ds_read_b32 v18, v14 offset:40960","ds_read_b32 v19, v14 offset:61440","s_waitcnt lgkmcnt(0)",
         "v_add_f32 v16, v16, v17","v_add_f32 v18, v18, v19","v_add_f32 v16, v16, v18",
         "s_lshl_b32 s19, s14, 8",f"s_add_u32 s19, s19, {WS_CS1}","buffer_store_dword v16, v14, s[8:11], s19 offen",
         f"s_branch {END}"])
    k.label("k0_w2")
    srd(k,36,(28,29),F*D*2)
    tr16_addr()
    assert all((x*57>>10)==x//18 for x in range(144))
    k.e(["s_sub_u32 s14, s2, 136","s_lshl_b32 s14, s14, 1","s_lshr_b32 s15, s3, 1","s_add_u32 s14, s14, s15",
         "s_and_b32 s27, s3, 1","s_mul_i32 s27, s27, 5",
         "s_movk_i32 s15, 1152","v_mul_lo_u32 v10, v5, s15","v_add_u32 v10, v10, v6",
         "s_mul_i32 s18, s14, %d"%(32*1152),"s_lshl_b32 s19, s27, 7","s_add_u32 s18, s18, s19",
         "s_and_b32 s33, s3, 1","s_mul_i32 s33, s33, 4","s_add_u32 s33, s33, 5",
         "s_mov_b32 s26, s31","s_mov_b32 s23, s27"])
    k.label("k0_w2l")
    for q in range(4):
        k.e([f"s_add_u32 m0, s26, {q*1024}",f"s_add_u32 s19, s18, {q*8*1152}","buffer_load_dwordx4 v10, s[36:39], s19 offen lds"])
    k.e(["s_add_u32 s26, s26, 4096","s_add_u32 s18, s18, 128","s_add_u32 s23, s23, 1","s_cmp_lt_u32 s23, s33","s_cbranch_scc1 k0_w2l"])
    k.e(["s_mul_i32 s22, s14, 57","s_lshr_b32 s22, s22, 10","s_mul_i32 s23, s22, 18","s_sub_u32 s23, s14, s23",
         f"s_mul_i32 s26, s22, {4*W12_WAVE}","s_add_u32 s23, s23, 162","s_lshl_b32 s23, s23, 10","s_add_u32 s26, s26, s23",f"s_add_u32 s26, s26, {WS_W12}","s_waitcnt vmcnt(0)"])
    k.label("k0_w2p")
    for f in range(4):
        k.e([f"ds_read_b64_tr_b16 v[{20+4*f}:{21+4*f}], v17 offset:{f*32}",f"ds_read_b64_tr_b16 v[{22+4*f}:{23+4*f}], v17 offset:{f*32+2048}"])
    for f in range(4):
        k.e(["s_lshl_b32 s28, s27, 1",f"s_add_u32 s28, s28, {f>>1}","s_and_b32 s28, s28, 3","s_lshr_b32 s29, s27, 1","s_lshl_b32 s29, s29, 1",f"s_add_u32 s29, s29, {f&1}",
             "s_cmp_eq_u32 s27, 8",f"s_cselect_b32 s28, {f}, s28","s_cselect_b32 s29, 8, s29",
             f"s_mul_i32 s28, s28, {W12_WAVE}","s_mul_i32 s29, s29, 18432","s_add_u32 s28, s28, s29",f"s_add_u32 s{40+f}, s28, s26"])
    k.e("s_waitcnt lgkmcnt(0)")
    for f in range(4): k.e(f"buffer_store_dwordx4 v[{20+4*f}:{23+4*f}], v1, s[8:11], s{40+f} offen")
    k.e(["v_add_u32 v17, 4096, v17","s_add_u32 s27, s27, 1","s_cmp_lt_u32 s27, s33","s_nop 0","s_cbranch_scc1 k0_w2p",f"s_branch {END}"])
    k.label("k0_wo")
    srd(k,36,(20,21),D*D*2)
    k.e(["s_sub_u32 s14, s2, 208","s_lshl_b32 s14, s14, 2","s_add_u32 s14, s14, s3"])
    for q in range(2):
        k.e([f"v_add_u32 v11, {8*q}, v5",
             "s_mul_i32 s18, s14, 18","v_add_u32 v12, s18, v11",
             "v_lshrrev_b32 v13, 2, v11","v_and_b32 v13, 1, v13","v_lshlrev_b32 v13, 2, v13",
             "v_and_b32 v14, 3, v11",f"v_add_u32 v14, {4*q}, v14",
             "v_lshrrev_b32 v15, 1, v14","v_add_u32 v13, v13, v15",
             "s_sub_u32 s18, s14, 32","s_lshl_b32 s18, s18, 3","v_add_u32 v13, s18, v13","v_mul_u32_u24 v13, 18, v13","v_and_b32 v14, 1, v14","v_add_u32 v13, v13, v14","v_add_u32 v13, 16, v13",
             "s_cmp_lt_u32 s14, 32","s_cselect_b64 vcc, -1, 0","v_cndmask_b32 v12, v13, v12, vcc",
             "s_movk_i32 s15, 1152",f"v_mul_lo_u32 v{40+q}, v12, s15",f"v_add_u32 v{40+q}, v{40+q}, v6"])
    for m in range(9):
        for q in range(2):
            k.e([f"s_movk_i32 s19, {m*128}", f"s_add_u32 m0, s30, {m*2048+q*1024}", "s_nop 0",
                 f"buffer_load_dwordx4 v{40+q}, s[36:39], s19 offen lds"])
    def dst_wo(m,f):
        nt=2*m+f
        k.e(["s_lshl_b32 s19, s14, 10",f"s_add_u32 s19, s19, {WS_WO+nt*AFB}"])
    process_units(k,dst_wo)
    k.e(f"s_branch {END}")
    k.label("k0_qkv")
    srd(k,36,(16,17),D*3*D*2)
    k.e(["s_sub_u32 s14, s2, 217","s_lshr_b32 s15, s14, 3","s_and_b32 s14, s14, 7",
         "s_mul_i32 s30, s3, 9216",
         "v_lshrrev_b32 v5, 2, v0","v_and_b32 v6, 3, v0",
         "s_lshl_b32 s18, s15, 2"])
    k.e(["s_add_u32 s19, s18, s14","s_mul_i32 s19, s19, 18","v_lshlrev_b32 v10, 3, v6","v_add_u32 v10, s19, v10","v_add_u32 v11, 560, v10","v_cmp_gt_u32 vcc, 2, v6","s_nop 1","v_cndmask_b32 v10, v11, v10, vcc",
         "s_sub_u32 s19, s14, 5","s_lshl_b32 s19, s19, 5","v_lshlrev_b32 v12, 3, v6","v_add_u32 v12, s19, v12","s_mul_i32 s22, s15, 72","s_add_u32 s22, s22, 1152","v_add_u32 v13, s22, v12",
         "v_mov_b32 v16, 0x20000000","v_cmp_gt_u32 vcc, 72, v12","s_nop 1","v_cndmask_b32 v13, v16, v13, vcc",
         "s_cmp_lt_u32 s14, 4","s_cselect_b64 vcc, -1, 0","v_cndmask_b32 v10, v13, v10, vcc","v_lshlrev_b32 v10, 1, v10",
         "v_mul_u32_u24 v11, 3456, v5","v_add_u32 v10, v10, v11",
         "v_and_b32 v12, 15, v0","v_lshrrev_b32 v13, 1, v12","v_and_b32 v13, 1, v13","v_mul_u32_u24 v13, 576, v13","v_and_b32 v14, 1, v12","v_lshrrev_b32 v15, 2, v12","v_lshlrev_b32 v15, 1, v15","v_add_u32 v14, v14, v15",
         "v_add_u32 v14, s18, v14","v_mul_u32_u24 v14, 18, v14","v_add_u32 v13, v13, v14","v_add_u32 v13, 16, v13","v_cmp_gt_u32 vcc, 8, v12","s_nop 1","v_cndmask_b32 v13, v16, v13, vcc","v_lshlrev_b32 v13, 1, v13",
         "v_lshrrev_b32 v14, 4, v0","v_mul_u32_u24 v14, 3456, v14","v_add_u32 v13, v13, v14",
         "s_mul_i32 s18, s3, %d"%(16*3456),"s_mov_b32 s23, 9","s_mov_b32 s26, s30","s_cmp_eq_u32 s14, 4","s_cbranch_scc1 k0_qkv4"])
    k.label("k0_qkvl")
    k.e(["s_mov_b32 m0, s26","s_add_u32 s26, s26, 1024","buffer_load_dwordx4 v10, s[36:39], s18 offen lds","s_add_u32 s18, s18, %d"%(64*3456),"s_sub_u32 s23, s23, 1","s_cmp_lg_u32 s23, 0","s_cbranch_scc1 k0_qkvl","s_branch k0_qkvp"])
    k.label("k0_qkv4")
    for q in range(4):
        k.e([f"s_add_u32 m0, s26, {q*256}",f"s_add_u32 s19, s18, {q*4*3456}","buffer_load_dword v13, s[36:39], s19 offen lds"])
    k.e(["s_add_u32 s26, s26, 1024","s_add_u32 s18, s18, %d"%(64*3456),"s_sub_u32 s23, s23, 1","s_cmp_lg_u32 s23, 0","s_cbranch_scc1 k0_qkv4"])
    k.label("k0_qkvp")
    k.e(["v_lshrrev_b32 v8, 2, v0","v_and_b32 v8, 3, v8","v_lshlrev_b32 v9, 2, v3","v_add_u32 v8, v8, v9","v_lshlrev_b32 v8, 6, v8",
         "v_lshrrev_b32 v9, 4, v0","v_and_b32 v9, 1, v9","v_lshlrev_b32 v9, 5, v9","v_add_u32 v8, v8, v9","v_and_b32 v9, 3, v0","v_lshlrev_b32 v9, 3, v9","v_add_u32 v8, v8, v9","v_add_u32 v7, s30, v8",
         "s_lshl_b32 s22, s15, 2","s_and_b32 s23, s14, 3","s_add_u32 s22, s22, s23",f"s_mul_i32 s22, s22, {WQKV_WAVE}",
         "s_lshr_b32 s23, s14, 2","s_mul_i32 s23, s23, 36","s_add_u32 s23, s23, s3","s_lshl_b32 s23, s23, 10","s_add_u32 s22, s22, s23",f"s_add_u32 s22, s22, {WS_WQKV}",
         "s_mov_b32 s23, 9","s_waitcnt vmcnt(0)"])
    k.label("k0_qkvs")
    k.e(["ds_read_b64_tr_b16 v[16:17], v7","ds_read_b64_tr_b16 v[18:19], v7 offset:512","v_add_u32 v7, 1024, v7","s_waitcnt lgkmcnt(0)",
         "buffer_store_dwordx4 v[16:19], v1, s[8:11], s22 offen","s_add_u32 s22, s22, 4096","s_sub_u32 s23, s23, 1","s_cmp_lg_u32 s23, 0","s_nop 1","s_cbranch_scc1 k0_qkvs"])
    k.label(END)
    if Kern.STAMPS:
        k.stamp(6); k.e("s_waitcnt vmcnt(0)"); k.stamp(7); k.stamp_dump(int(os.environ.get("K0WG","0")))
    k.e("s_endpgm")
    return k, NWG0, 256, 81920
```

```python
from asmlib import *
from layout import *
from gemm import *
from k0 import fbits, ws_srd, layer_srd, layer_aliases
import os
LS="s[44:47]"
def xdma(k, i, nw, sbase_lds, sbase_g, srd=LS, tmp="s16"):
    return [f"s_add_u32 m0, {sbase_lds}, {i*nw*1024}", f"s_add_u32 {tmp}, {sbase_g}, {i*nw*1024}",
            ("vm",f"buffer_load_dwordx4 v1, {srd}, {tmp} offen lds",("X",i))]
def gen_k1():
    k=Kern("k1_qkv", nvgpr=256, nagpr=256, nsgpr=64); layer_aliases(k,"k1_qkv")
    END=k.name+"_end"
    k.e([f"s_cmp_ge_u32 s2, 256", f"s_cbranch_scc1 {END}",
         "s_load_dwordx2 s[4:5], s[0:1], 64"]); k.stamp(0)
    k.e(["v_lshrrev_b32 v1, 6, v0","v_and_b32 v0, 63, v0","s_nop 0","v_readfirstlane_b32 s3, v1",
         "v_lshlrev_b32 v1, 4, v0","v_and_b32 v2, 31, v0","v_lshrrev_b32 v3, 5, v0","v_add_u32 v4, 32768, v1",
         "s_lshr_b32 s16, s2, 3","s_and_b32 s13, s2, 1","s_lshl_b32 s13, s13, 2","s_and_b32 s17, s16, 3","s_add_u32 s13, s13, s17",
         "s_lshr_b32 s12, s2, 1","s_and_b32 s12, s12, 3","s_lshl_b32 s12, s12, 3","s_lshr_b32 s16, s16, 2","s_add_u32 s12, s12, s16",
         "s_and_b32 s15, s3, 1",f"s_mul_i32 s15, s15, {AFB}","s_lshr_b32 s14, s3, 1","s_lshl_b32 s14, s14, 10","s_add_u32 s15, s15, s14",
         f"s_mul_i32 s14, s12, {2*AFB}",f"s_add_u32 s14, s14, {L_XN2}","s_add_u32 s14, s14, s15",
         "s_lshl_b32 s20, s13, 2","s_add_u32 s20, s20, s3",f"s_mul_i32 s20, s20, {WQKV_WAVE}",f"s_add_u32 s20, s20, {WS_WQKV}",
         "s_waitcnt lgkmcnt(0)"])
    k.stamp(1)
    layer_srd(k); ws_srd(k,8,(4,5))
    RING=16; R=18; ACC0=96; ACC1=128; BT=160
    st=Stream(k,RING,R,72,btail=BT)
    k.e(["s_cmp_eq_u32 s3, 0","s_cselect_b32 s17, 16, 32","s_cmp_eq_u32 s3, 3","s_cselect_b32 s17, 8, s17","v_mov_b32 v11, 0x7f000000","v_cmp_gt_u32 vcc, s17, v2","s_nop 1","v_cndmask_b32 v11, v11, v1, vcc"])
    if 'nomask' not in os.environ.get('X1',''): st.voff_fn=lambda n: "v11" if n>=36 else "v1"
    def xd(i): return [f"s_add_u32 m0, s15, {i*2048}", f"s_add_u32 s16, s14, {i*2048}", ("vm",f"buffer_load_dwordx4 v1, {LS}, s16 offen lds",("X",i))]
    for i in range(6):
        for it in xd(i): st.place(it)
    st.prefetch(9)
    for i in range(6,18):
        for it in xd(i): st.place(it)
    k.e(["s_lshl_b32 s21, s13, 2","s_add_u32 s22, s21, s3",
         "s_lshl_b32 s23, s12, 1",
         "s_lshl_b32 s24, s22, 16","s_lshl_b32 s25, s23, 10","s_add_u32 s24, s24, s25",f"s_add_u32 s24, s24, {CUR+L_Q1}",
         f"s_mul_i32 s25, s22, {KV_HEAD}",f"s_mul_i32 s26, s23, {KVREC}","s_add_u32 s25, s25, s26",f"s_add_u32 s25, s25, {CUR+L_KV}",
         f"s_mov_b32 s27, {fbits(QSCALE)}"])
    k.vm_wait(("X",5)); k.e("s_barrier"); k.stamp(2)
    bj=lambda u,kap: f"ds_read_b128 {st.breg(u,kap)}, v1 offset:{u*AFB+kap*1024}" if u*AFB+kap*1024<65536 else f"ds_read_b128 {st.breg(u,kap)}, v4 offset:{u*AFB+kap*1024-32768}"
    LA=3
    post={}
    at={12-LA:[("vmwait",("X",11)),"s_barrier"],24-LA:[("vmwait",("X",17)),"s_barrier"]}
    st.tile((ACC0,ACC0+16),list(range(36)),bjit=bj,la=LA,boost=1,hold=9,burst=8,post=post,at=at)
    k.stamp(3)
    PK=192
    def epi_qk():
        f=[]
        for u in range(2):
            a=ACC0+16*u; p=PK+8*u
            for i in range(8): f.append(f"v_mul_f32 v{a+i}, s27, v{a+i}")
            for j in range(4): f.append(f"v_cvt_pk_bf16_f32 v{p+j}, v{a+2*j}, v{a+2*j+1}")
            for j in range(4): f.append(f"v_cvt_pk_bf16_f32 v{p+4+j}, v{a+8+2*j}, v{a+8+2*j+1}")
            f.append(("vm",f"buffer_store_dwordx4 v[{p}:{p+3}], v1, {LS}, s24 offen offset:{u*1024}",None))
            f.append(("vm",f"buffer_store_dwordx4 v[{p+4}:{p+7}], v1, {LS}, s25 offen offset:{u*KVREC}",None))
        return f
    LV=k.name+"_v"
    addr_left=["v_mov_b32 v5, 1.0","v_mov_b32 v6, s27","v_cmp_gt_u32 vcc, 32, v0","s_nop 1","v_cndmask_b32 v5, v5, v6, vcc",
         "s_lshl_b32 s28, s21, 13","s_lshl_b32 s29, s23, 7","s_add_u32 s28, s28, s29",f"s_add_u32 s28, s28, {CUR+L_Q2}",
         f"s_mul_i32 s29, s21, {KV_HEAD}",f"s_mul_i32 s30, s23, {KVREC}","s_add_u32 s29, s29, s30",f"s_add_u32 s29, s29, {CUR+L_KV+2304}",
         "v_mov_b32 v7, s29","v_mov_b32 v8, s28","v_cndmask_b32 v7, v7, v8, vcc","v_lshlrev_b32 v8, 2, v2","v_add_u32 v7, v7, v8",
         f"v_mov_b32 v8, {KV_HEAD}","v_mov_b32 v9, 8192","v_cndmask_b32 v8, v8, v9, vcc",
         f"v_mov_b32 v9, {KVREC}","v_mov_b32 v10, 128","v_cndmask_b32 v9, v9, v10, vcc"]
    addr_v=["s_sub_u32 s28, s3, 1","s_lshl_b32 s28, s28, 5","v_add_u32 v5, s28, v2",
         "v_mul_u32_u24 v6, 57, v5","v_lshrrev_b32 v6, 10, v6",
         "v_mul_u32_u24 v7, 18, v6","v_sub_u32 v7, v5, v7",
         "v_subrev_u32 v8, 72, v5","v_lshrrev_b32 v9, 2, v8","v_add_u32 v9, 18, v9","v_and_b32 v8, 3, v8",
         "v_cmp_gt_u32 vcc, 72, v5","s_nop 1","v_cndmask_b32 v6, v8, v6, vcc","v_cndmask_b32 v7, v9, v7, vcc",
         "v_cmp_ne_u32 s[32:33], 18, v7",
         f"s_mov_b32 s30, {KV_HEAD}","v_mul_lo_u32 v6, v6, s30","v_lshlrev_b32 v7, 4, v7","v_add_u32 v6, v6, v7",
         "v_mul_u32_u24 v7, 320, v3","v_add_u32 v6, v6, v7",
         "v_mov_b32 v8, 0x7f000000","v_cmp_gt_u32 vcc, 80, v5","s_nop 1","v_cndmask_b32 v6, v8, v6, vcc",
         f"s_mul_i32 s28, s21, {KV_HEAD}",f"s_mul_i32 s29, s23, {KVREC}","s_add_u32 s28, s28, s29",f"s_add_u32 s28, s28, {CUR+L_KV+1024}",
         "v_mov_b32 v9, 0x3f803f80"]
    k.e(["s_cmp_lg_u32 s3, 0",f"s_cbranch_scc1 {LV}"])
    save=st.save()
    st.tile((ACC1,ACC1+16),list(range(36)),fillers=epi_qk()+addr_left,fill_start=5)
    k.stamp(4)
    k.e("s_nop 10")
    for u in range(2):
        a=ACC1+16*u
        for i in range(8): k.e(f"v_mul_f32 v{a+i}, v5, v{a+i}")
        for j in range(4): k.e(f"v_cvt_pk_bf16_f32 v{PK+j}, v{a+2*j}, v{a+2*j+1}")
        k.e(f"v_mov_b32 v10, v7")
        for j in range(4):
            k.e(f"buffer_store_dword v{PK+j}, v10, {LS}, 0 offen")
            k.e("v_add_u32 v10, v10, v8")
        k.e("v_add_u32 v7, v7, v9")
    k.stamp(5); k.stamp_dump()
    k.e(f"s_branch {END}")
    k.label(LV)
    st.restore(save)
    st.tile((ACC1,ACC1+16),list(range(36)),fillers=epi_qk()+addr_v,swap=True,fill_start=5)
    k.stamp(4)
    k.e("s_nop 10")
    for u in range(2):
        a=ACC1+16*u; p=PK+8*u
        for j in range(8): k.e(f"v_cvt_pk_bf16_f32 v{p+j}, v{a+2*j}, v{a+2*j+1}")
        for j in range(8): k.e(f"v_cndmask_b32 v{p+j}, v9, v{p+j}, s[32:33]")
        k.e(f"buffer_store_dwordx4 v[{p}:{p+3}], v6, {LS}, s28 offen offset:{u*KVREC}")
        k.e(f"buffer_store_dwordx4 v[{p+4}:{p+7}], v6, {LS}, s28 offen offset:{u*KVREC+640}")
    k.stamp(5); k.stamp_dump()
    k.label(END); k.e("s_endpgm")
    return k,256,256,73728
```

```python
from asmlib import *
from layout import *
from k0 import fbits, ws_srd, layer_srd, layer_aliases
LS="s[44:47]"
Q1=8; Q2=12; K1=16; K2=20; V0=24; V1=28; S=(32,48); P=64; O=72
AK1=4; AK2=5; AV=6
def mf16(d,a,b,c): return f"v_mfma_f32_32x32x16_bf16 v[{d}:{d+15}], v[{a}:{a+3}], v[{b}:{b+3}], {c}"
def mf8(d,a,b,c): return f"v_mfma_f32_32x32x8_bf16 v[{d}:{d+15}], v[{a}:{a+1}], v[{b}:{b+1}], {c}"
def acc(d): return f"v[{d}:{d+15}]"
def tile_body(t):
    c=S[t&1]; n=S[(t+1)&1]
    ex=lambda i: f"v_exp_f32 v{c+i}, v{c+i}"
    cv=lambda j: f"v_cvt_pk_bf16_f32 v{P+j}, v{c+2*j}, v{c+2*j+1}"
    o=[]
    o+=[ex(0),ex(1), mf16(O,V1,P+4,acc(O)),
        f"ds_read_b128 v[{V0}:{V0+3}], v{AV} offset:{t*KVREC}", f"ds_read_b128 v[{V1}:{V1+3}], v{AV} offset:{t*KVREC+640}",
        ex(2),ex(3),cv(0),"s_waitcnt lgkmcnt(2)", mf16(n,K1,Q1,"0"),
        ex(4),ex(5),cv(1),ex(6),ex(7), mf8(n,K2,Q2,acc(n)),
        f"ds_read_b128 v[{K1}:{K1+3}], v{AK1} offset:{(t+2)*KVREC}", f"ds_read_b32 v{K2}, v{AK2} offset:{(t+2)*KVREC}",
        cv(2),ex(8),cv(3),ex(9),ex(10),"s_waitcnt lgkmcnt(2)", mf16(O,V0,P,acc(O)),
        ex(11),cv(4),ex(12),ex(13),cv(5),ex(14),ex(15),cv(6),cv(7)]
    import os
    X=os.environ.get('X2','')
    if 'nolds' in X: o=[x for x in o if not x.startswith(('ds_read','s_waitcnt'))]
    if 'nowait' in X: o=[x for x in o if not x.startswith('s_waitcnt')]
    if 'nomfma' in X: o=[x for x in o if not x.startswith('v_mfma')]
    if 'nok2' in X: o=[x for x in o if not x.startswith('ds_read_b32')]
    return o
def gen_k2():
    k=Kern("k2_attn", nvgpr=128, nsgpr=64); layer_aliases(k,"k2_attn")
    B=CUR; END=k.name+"_end"
    k.e([f"s_cmp_ge_u32 s2, 256", f"s_cbranch_scc1 {END}",
         "s_load_dwordx2 s[4:5], s[0:1], 64"]); k.stamp(0)
    k.e(["v_lshrrev_b32 v1, 6, v0","v_and_b32 v0, 63, v0","s_nop 0","v_readfirstlane_b32 s3, v1",
         "v_lshlrev_b32 v1, 4, v0","v_and_b32 v2, 31, v0","v_lshrrev_b32 v3, 5, v0",
         "s_and_b32 s12, s2, 7","s_lshl_b32 s12, s12, 2","s_lshr_b32 s13, s2, 3","s_and_b32 s13, s13, 3","s_add_u32 s12, s12, s13",
         "s_lshr_b32 s13, s2, 5","s_lshl_b32 s13, s13, 3","s_add_u32 s13, s13, s3",
         "s_lshl_b32 s14, s12, 16","s_lshl_b32 s15, s13, 10","s_add_u32 s14, s14, s15",f"s_add_u32 s14, s14, {B+L_Q1}",
         "s_lshl_b32 s15, s12, 13","s_lshl_b32 s16, s13, 7","s_add_u32 s15, s15, s16",f"s_add_u32 s15, s15, {B+L_Q2}",
         "v_lshlrev_b32 v7, 2, v2","v_mov_b32 v93, 0x7f000000","v_cmp_gt_u32 vcc, 32, v0",
         f"s_mul_i32 s16, s12, {KV_HEAD}","s_lshl_b32 s17, s3, 10","s_add_u32 s16, s16, s17",f"s_add_u32 s16, s16, {B+L_KV}",
         "v_cndmask_b32 v93, v93, v7, vcc",
         "s_waitcnt lgkmcnt(0)"])
    k.stamp(1)
    layer_srd(k); ws_srd(k,8,(4,5))
    k.e([f"buffer_load_dwordx4 v[{Q1}:{Q1+3}], v1, {LS}, s14 offen", f"buffer_load_dword v{Q2}, v93, {LS}, s15 offen"])
    dma=lambda n: [f"s_add_u32 m0, s17, {n*8192}", f"s_add_u32 s18, s16, {n*8192}", f"buffer_load_dwordx4 v1, {LS}, s18 offen lds"]
    for n in range(3): k.e(dma(n))
    k.e([f"v_mov_b32 v{AK1}, v1", f"v_add_u32 v{AK2}, 2304, v7", "v_mul_u32_u24 v94, 320, v3","v_min_u32 v95, 19, v2","v_lshlrev_b32 v95, 4, v95","v_add_u32 v94, v94, v95",f"v_add_u32 v{AV}, 1024, v94",
         f"v_mov_b32 v{Q2+1}, 0", f"v_mov_b32 v{K2+1}, 0"])
    for i in range(16): k.e(f"v_mov_b32 v{O+i}, 0")
    for i in range(4): k.e([f"v_mov_b32 v{P+4+i}, 0", f"v_mov_b32 v{V1+i}, 0"])
    k.e(["s_waitcnt vmcnt(0)","s_barrier"]); k.stamp(2)
    k.e([f"ds_read_b128 v[{K1}:{K1+3}], v{AK1}", f"ds_read_b32 v{K2}, v{AK2}", "s_waitcnt lgkmcnt(0)",
         mf16(S[0],K1,Q1,"0"), mf8(S[0],K2,Q2,acc(S[0])),
         f"ds_read_b128 v[{K1}:{K1+3}], v{AK1} offset:{KVREC}", f"ds_read_b32 v{K2}, v{AK2} offset:{KVREC}",
         "s_nop 10"])
    LOOP=k.name+"_loop"
    for t in range(8):
        b=tile_body(t)
        if t<4:
            ex=[]
            for n in range(3+4*t,7+4*t): ex+=dma(n)
            b=b[:5]+ex[:6]+b[5:17]+ex[6:]+b[17:]
        k.e(b)
    adv=[f"v_add_u32 v{AK1}, {8*KVREC}, v{AK1}", f"v_add_u32 v{AK2}, {8*KVREC}, v{AK2}", f"v_add_u32 v{AV}, {8*KVREC}, v{AV}"]
    import os
    NB=min(int(os.environ.get('NB45','2')),2); per=NB*1296//32
    k.e([f"s_and_b32 s21, s2, {8//NB-1}",f"s_mul_i32 s21, s21, {NB*4*W12_WAVE}","s_lshr_b32 s22, s2, 3",f"s_mul_i32 s22, s22, {per*1024}","s_add_u32 s21, s21, s22",f"s_add_u32 s21, s21, {WS_W12}",
         "s_add_u32 s22, s21, %d"%((per-1)*1024),"s_lshl_b32 s23, s3, 10","s_add_u32 s21, s21, s23"])
    k.e(adv+["s_waitcnt vmcnt(0)","s_barrier","s_mov_b32 s20, 1"]); k.stamp(3)
    k.code_prefetch("k3_wo0_kernel","k6_red_codeend",8,96)
    body=[]
    for t in range(8): body+=tile_body(t)
    k.e(".p2align 6")
    k.label(LOOP)
    import os
    if 'noprio' not in os.environ.get('X2',''):
        PA=k.newlabel("pa"); PB=k.newlabel("pb")
        k.e(["s_lshr_b32 s23, s3, 2","s_xor_b32 s23, s23, s20","s_and_b32 s23, s23, 1",f"s_cbranch_scc1 {PA}","s_setprio 0",f"s_branch {PB}"])
        k.label(PA); k.e("s_setprio 1"); k.label(PB)
    NB=int(os.environ.get('NB45','2'))
    if NB<=2 and 'pf' in os.environ.get('X2','').split('_'):
        for _ in range(NB): k.e(["s_min_u32 s23, s21, s22","buffer_load_dwordx4 v[104:107], v1, s[8:11], s23 offen","s_add_u32 s21, s21, 8192"])
    k.e(body)
    k.e(adv+["s_add_u32 s20, s20, 1","s_cmp_lt_u32 s20, 8",f"s_cbranch_scc1 {LOOP}"])
    k.e(["s_setprio 0", mf16(O,V1,P+4,acc(O))]); k.stamp(4)
    k.e(["s_waitcnt lgkmcnt(0)","s_nop 10"])
    CHK=k.name+"_chk"; FIN=k.name+"_fin"; SLOW=k.name+"_slow"
    def lbcast():
        k.e([f"v_mov_b32 v32, v{O+10}", f"v_mov_b32 v33, v{O+10}", "s_nop 1", "v_permlane32_swap_b32 v32, v33", "s_nop 1"])
    lbcast()
    k.e([f"v_mov_b32 v34, {fbits(2.0**-64)}", f"v_mov_b32 v35, {fbits(2.0**64)}", f"v_mov_b32 v36, {fbits(2.0**126)}",
         "v_cmp_ge_f32 s[22:23], v32, v34","v_cmp_le_f32 s[24:25], v32, v35","s_nop 1","s_and_b64 s[22:23], s[22:23], s[24:25]"])
    for i in range(8):
        k.e([f"v_cmp_lt_f32 s[24:25], |v{O+i}|, v36","s_nop 1","s_and_b64 s[22:23], s[22:23], s[24:25]"])
    k.e(["v_cmp_lt_u32 s[26:27], 31, v0"])
    for i in (8,9):
        k.e([f"v_cmp_lt_f32 s[24:25], |v{O+i}|, v36","s_nop 1","s_or_b64 s[24:25], s[24:25], s[26:27]","s_and_b64 s[22:23], s[22:23], s[24:25]"])
    k.e(["s_cmp_eq_u64 s[22:23], -1", f"s_cbranch_scc0 {SLOW}"])
    k.label(FIN)
    k.e(["v_rcp_f32 v33, v32","s_nop 0"])
    for i in range(10): k.e(f"v_mul_f32 v{O+i}, v{O+i}, v33")
    for j in range(5): k.e(f"v_cvt_pk_bf16_f32 v{40+j}, v{O+2*j}, v{O+2*j+1}")
    k.e([f"s_mul_i32 s14, s13, {AFB}","s_lshl_b32 s15, s12, 10","s_add_u32 s15, s15, s14",f"s_add_u32 s15, s15, {B+L_O}",
         "buffer_store_dwordx4 v[40:43], v1, s[44:47], s15 offen",
         "s_lshr_b32 s16, s12, 3","s_add_u32 s16, s16, 32","s_lshl_b32 s16, s16, 10","s_add_u32 s16, s16, s14",
         "s_lshr_b32 s17, s12, 2","s_and_b32 s17, s17, 1","s_lshl_b32 s17, s17, 9","s_add_u32 s16, s16, s17",
         "s_and_b32 s17, s12, 3","s_lshl_b32 s17, s17, 2","s_add_u32 s16, s16, s17",f"s_add_u32 s16, s16, {B+L_O}",
         "v_lshlrev_b32 v7, 4, v2","v_mov_b32 v93, 0x7f000000","v_cmp_gt_u32 vcc, 32, v0","s_nop 1","v_cndmask_b32 v93, v93, v7, vcc",
         "buffer_store_dword v44, v93, s[44:47], s16 offen"])
    k.stamp(5); k.stamp_dump()
    k.e(f"s_branch {END}")
    k.label(SLOW)
    k.e([f"v_mov_b32 v{AK1}, v1","v_lshlrev_b32 v7, 2, v2",f"v_add_u32 v{AK2}, 2304, v7", "v_mul_u32_u24 v94, 320, v3","v_min_u32 v95, 19, v2","v_lshlrev_b32 v95, 4, v95","v_add_u32 v94, v94, v95",f"v_add_u32 v{AV}, 1024, v94",
         "v_mov_b32 v90, 0xff7fffff","s_mov_b32 s20, 0"])
    for i in range(16): k.e(f"v_mov_b32 v{O+i}, 0")
    SL=k.name+"_sl"
    k.label(SL)
    c=S[0]
    k.e([f"ds_read_b128 v[{K1}:{K1+3}], v{AK1}", f"ds_read_b32 v{K2}, v{AK2}", f"ds_read_b128 v[{V0}:{V0+3}], v{AV}", f"ds_read_b128 v[{V1}:{V1+3}], v{AV} offset:640",
         "s_waitcnt lgkmcnt(0)", mf16(c,K1,Q1,"0"), mf8(c,K2,Q2,acc(c)), "s_nop 11"])
    k.e(f"v_max_f32 v91, v{c}, v{c+1}")
    for i in range(2,16,2): k.e(f"v_max3_f32 v91, v91, v{c+i}, v{c+i+1}")
    k.e(["v_mov_b32 v92, v91","s_nop 1","v_permlane32_swap_b32 v91, v92","s_nop 1","v_max3_f32 v91, v91, v92, v90",
         "v_sub_f32 v92, v90, v91","v_exp_f32 v92, v92","v_mov_b32 v90, v91","s_nop 0"])
    for i in range(16): k.e(f"v_mul_f32 v{O+i}, v{O+i}, v92")
    for i in range(16): k.e(f"v_sub_f32 v{c+i}, v{c+i}, v91")
    for i in range(16): k.e(f"v_exp_f32 v{c+i}, v{c+i}")
    k.e("s_nop 0")
    for j in range(8): k.e(f"v_cvt_pk_bf16_f32 v{P+j}, v{c+2*j}, v{c+2*j+1}")
    k.e(["s_nop 1", mf16(O,V0,P,acc(O)), mf16(O,V1,P+4,acc(O)),
         f"v_add_u32 v{AK1}, {KVREC}, v{AK1}", f"v_add_u32 v{AK2}, {KVREC}, v{AK2}", f"v_add_u32 v{AV}, {KVREC}, v{AV}",
         "s_nop 9","s_add_u32 s20, s20, 1","s_cmp_lt_u32 s20, 64",f"s_cbranch_scc1 {SL}","s_nop 4"])
    lbcast()
    k.e(f"s_branch {FIN}")
    k.label(END); k.e("s_endpgm")
    p=check_hazards(body+body,k.name+"(loop)")
    for x in p: print("HAZARD",x)
    return k,256,512,163840
```

```python
from asmlib import *
from layout import *
from gemm import *
from k0 import fbits, ws_srd, cross_half_add, layer_srd, layer_aliases
LS="s[44:47]"
def gen_k3():
    k=Kern("k3_wo", nvgpr=256, nagpr=256, nsgpr=64); layer_aliases(k,"k3_wo")
    END=k.name+"_end"
    k.e([f"s_cmp_ge_u32 s2, 192", f"s_cbranch_scc1 {END}",
         "s_load_dwordx2 s[4:5], s[0:1], 64"]); k.stamp(0)
    k.e(["v_lshrrev_b32 v1, 6, v0","v_and_b32 v0, 63, v0","s_nop 0","v_readfirstlane_b32 s3, v1",
         "v_lshlrev_b32 v1, 4, v0","v_and_b32 v2, 31, v0","v_lshrrev_b32 v3, 5, v0","v_add_u32 v4, 32768, v1",
         "s_lshr_b32 s12, s2, 3","s_mul_i32 s13, s12, 43","s_lshr_b32 s13, s13, 8",
         "s_mul_i32 s14, s13, 6","s_sub_u32 s14, s12, s14",
         "s_lshl_b32 s13, s13, 3","s_and_b32 s12, s2, 7","s_add_u32 s12, s12, s13",
         "s_mul_i32 s13, s14, 3","s_add_u32 s13, s13, s3",
         f"s_mul_i32 s14, s12, {2*AFB}",f"s_add_u32 s15, s14, {CUR+L_O}",
         f"s_mul_i32 s20, s13, {AFB}",f"s_add_u32 s20, s20, {WS_WO}",
         "s_waitcnt lgkmcnt(0)"]); k.stamp(1)
    assert all((r*43>>8)==r//6 for r in range(24))
    layer_srd(k); ws_srd(k,8,(4,5))
    RING=16; R=18; ACC0=96; BT=160
    st=Stream(k,RING,R,36,btail=BT)
    def xd(i):
        return [f"s_add_u32 s17, s3, {3*i}","s_and_b32 s18, s17, 1",f"s_mul_i32 s18, s18, {AFB}","s_lshr_b32 s17, s17, 1","s_lshl_b32 s17, s17, 10","s_add_u32 m0, s17, s18","s_add_u32 s17, m0, s15",
                ("vm",f"buffer_load_dwordx4 v1, {LS}, s17 offen lds",("X",i))]
    for i in range(8):
        for it in xd(i): st.place(it)
    st.prefetch(9)
    for i in range(8,24):
        for it in xd(i): st.place(it)
    RES=200
    k.e(["v_lshrrev_b32 v16, 4, v2","v_mul_u32_u24 v16, 18432, v16","v_and_b32 v17, 15, v2","v_lshlrev_b32 v18, 4, v3","v_add_u32 v17, v17, v18","v_lshlrev_b32 v17, 4, v17","v_add_u32 v192, v16, v17"]) if False else None
    k.e(["s_lshl_b32 s21, s13, 10","s_add_u32 s21, s21, s14",f"s_add_u32 s22, s21, {L_X2}",f"s_add_u32 s23, s22, {AFB}",f"s_add_u32 s24, s21, {CUR+L_X1}",f"s_add_u32 s25, s24, {AFB}"])
    k.vm_wait(("X",7)); k.e("s_barrier"); k.stamp(2)
    bj=lambda u,kap: f"ds_read_b128 {st.breg(u,kap)}, v1 offset:{u*AFB+kap*1024}" if u*AFB+kap*1024<65536 else f"ds_read_b128 {st.breg(u,kap)}, v4 offset:{u*AFB+kap*1024-32768}"
    LA=3
    post={}
    res=["v_lshrrev_b32 v6, 4, v2","v_mul_u32_u24 v6, 18432, v6","v_and_b32 v7, 15, v2","v_lshlrev_b32 v8, 4, v3","v_add_u32 v7, v7, v8","v_lshlrev_b32 v7, 4, v7","v_add_u32 v216, v6, v7"]
    res+=[("vm",f"buffer_load_dwordx4 v[{RES+8*u+4*s}:{RES+8*u+4*s+3}], v216, {LS}, s{22+u} offen offset:{s*512}","R") for u in range(2) for s in range(2)]
    post[12]=res
    at={12-LA:[("vmwait",("X",15)),"s_barrier"],24-LA:[("vmwait",("X",23)),"s_barrier"]}
    fl=["s_lshl_b32 s26, s12, 1",f"s_mul_i32 s26, s26, {ST_TT}","s_lshr_b32 s27, s13, 1","s_lshl_b32 s27, s27, 9","s_add_u32 s26, s26, s27","s_and_b32 s27, s13, 1","s_lshl_b32 s27, s27, 3","s_add_u32 s26, s26, s27",f"s_add_u32 s26, s26, {CUR+L_ST}",
        "v_lshlrev_b32 v5, 4, v2"]
    st.tile((ACC0,ACC0+16),list(range(36)),bjit=bj,la=LA,post=post,at=at,boost=1,hold=9,burst=8,fillers=fl,fill_start=40)
    k.stamp(3)
    k.vm_wait("R")
    k.e("s_nop 8")
    PK=224
    for u in range(2):
        a=ACC0+16*u; r=RES+8*u; p=PK+8*u
        rmap=[0,2,8,10,4,6,12,14]
        for j in range(8):
            i=rmap[j]
            k.e([f"v_lshlrev_b32 v6, 16, v{r+j}", f"v_and_b32 v7, 0xffff0000, v{r+j}", f"v_add_f32 v{a+i}, v{a+i}, v6", f"v_add_f32 v{a+i+1}, v{a+i+1}, v7"])
        for j in range(8): k.e(f"v_cvt_pk_bf16_f32 v{p+j}, v{a+rmap[j]}, v{a+rmap[j]+1}")
        k.e(f"buffer_store_dwordx4 v[{p}:{p+3}], v216, {LS}, s{24+u} offen")
        k.e(f"buffer_store_dwordx4 v[{p+4}:{p+7}], v216, {LS}, s{24+u} offen offset:512")
    for u in range(2):
        a=ACC0+16*u; s=8+2*u
        k.e([f"v_add_f32 v{s}, v{a}, v{a+1}",f"v_add_f32 v12, v{a+2}, v{a+3}"])
        for i in range(4,16,2): k.e([f"v_add_f32 v{s}, v{s}, v{a+i}",f"v_add_f32 v12, v12, v{a+i+1}"])
        k.e(f"v_add_f32 v{s}, v{s}, v12")
        cross_half_add(k,s,12)
        k.e([f"v_mul_f32 v13, {fbits(1.0/32)}, v{s}",f"v_mov_b32 v{s+1}, 0","v_mov_b32 v12, 0"])
        for i in range(0,16,2):
            k.e([f"v_sub_f32 v14, v{a+i}, v13",f"v_sub_f32 v15, v{a+i+1}, v13",f"v_fmac_f32 v{s+1}, v14, v14","v_fmac_f32 v12, v15, v15"])
        k.e(f"v_add_f32 v{s+1}, v{s+1}, v12")
        cross_half_add(k,s+1,12)
        k.e(f"buffer_store_dwordx2 v[{s}:{s+1}], v5, {LS}, s26 offen")
        if u==0: k.e(f"s_add_u32 s26, s26, {ST_TT}")
    k.stamp(4); k.stamp_dump()
    k.label(END); k.e("s_endpgm")
    return k,192,192,73728
```

```python
from asmlib import *
from layout import *
from gemm import *
from k0 import fbits, ws_srd, layer_srd, layer_aliases
import os
LS="s[44:47]"
HO=73728; XO=147456; T16=18432
X=os.environ.get('X45','')
NB=int(os.environ.get('NB45','2')); LB2=NB.bit_length()-1
BX=4
BH=8
HW=12
NM=16; C1=20; RS=24
CSA=28; CS=32
TMP=40
PK=56
AX=72; AY=88
RING=104; R=22
BT=192
ONE=30
LOG2E=1.4426950408889634
class S16(Stream):
    NU=4; ACCW=4; MF="v_mfma_f32_16x16x32_bf16"
def gen_k45():
    k=Kern("k45_mlp", nvgpr=256, nagpr=256, nsgpr=64); layer_aliases(k,"k45_mlp")
    B=CUR; END=k.name+"_end"
    k.e([f"s_cmp_ge_u32 s2, 256", f"s_cbranch_scc1 {END}",
         "s_load_dwordx2 s[4:5], s[0:1], 64"]); k.stamp(0)
    k.e(["v_lshrrev_b32 v1, 6, v0","v_and_b32 v0, 63, v0","s_nop 0","v_readfirstlane_b32 s3, v1",
         "v_lshlrev_b32 v1, 4, v0","v_lshrrev_b32 v3, 4, v0",
         "s_lshr_b32 s16, s2, 3",f"s_and_b32 s13, s2, {8//NB-1}",f"s_lshl_b32 s13, s13, {LB2}",f"s_and_b32 s17, s16, {NB-1}","s_add_u32 s13, s13, s17",
         "s_and_b32 s12, s2, 7",f"s_lshr_b32 s12, s12, {3-LB2}",f"s_lshl_b32 s12, s12, {5-LB2}",f"s_lshr_b32 s16, s16, {LB2}","s_add_u32 s12, s12, s16",
         f"s_mul_i32 s19, s3, {T16}",
         f"s_mul_i32 s18, s12, {4*T16}",f"s_add_u32 s18, s18, {B+L_X1}","s_add_u32 s18, s18, s19",
         "s_lshl_b32 s20, s13, 2","s_add_u32 s20, s20, s3",f"s_mul_i32 s20, s20, {W12_WAVE}",f"s_add_u32 s20, s20, {WS_W12}",
         "s_waitcnt lgkmcnt(0)"]); k.stamp(1)
    layer_srd(k); ws_srd(k,8,(4,5))
    if 'probe' in X:
        k.stamp(5); k.e(["s_add_u32 s21, s20, 102400","buffer_load_dwordx4 v[104:107], v1, s[8:11], s21 offen","s_waitcnt vmcnt(0)"]); k.stamp(6)
        k.e(["s_add_u32 s21, s20, 256000","buffer_load_dwordx4 v[104:107], v1, s[8:11], s21 offen","s_waitcnt vmcnt(0)"]); k.stamp(7)
        k.e([f"buffer_load_dwordx4 v[104:107], v1, {LS}, s18 offen","s_waitcnt vmcnt(0)"]); k.stamp(8)
    st=S16(k,RING,R,324,btail=BT)
    ROT='rot' in X.split('_')
    k.e(["s_and_b32 s17, s13, 1" if ROT else "s_mov_b32 s17, 0","s_mul_i32 s17, s17, 9216","s_add_u32 s14, s18, s17","s_sub_u32 s15, s18, s17"])
    def xd(i): return [f"s_add_u32 m0, s19, {i*1024}", f"s_add_u32 s21, {'s14' if i<9 else 's15'}, {i*1024}", ("vm",f"buffer_load_dwordx4 v1, {LS}, s21 offen lds",("X",i))]
    for i in range(6):
        for it in xd(i): st.place(it)
    st.prefetch(6)
    for i in range(6,18):
        for it in xd(i): st.place(it)
    STL=XO+4096
    k.e(["s_lshl_b32 s16, s12, 1",f"s_mul_i32 s16, s16, {ST_TT}",f"s_add_u32 s16, s16, {B+L_ST}"])
    for j in range(3):
        k.e([f"s_add_u32 s17, s3, {4*j}","s_min_u32 s17, s17, 8","s_lshl_b32 s17, s17, 10",f"s_add_u32 m0, s17, {STL}","s_add_u32 s21, s16, s17"])
        k.vm_op(f"buffer_load_dwordx4 v1, {LS}, s21 offen lds","CSD")
    k.e([f"s_mul_i32 s22, s13, 2304",f"s_add_u32 s22, s22, {WS_CS1}","s_lshl_b32 s23, s3, 10","s_add_u32 s22, s22, s23",f"s_add_u32 m0, s23, {XO}","s_nop 0"])
    k.vm_op("buffer_load_dwordx4 v1, s[8:11], s22 offen lds","CSD")
    STR=lambda r: (88+r if r<16 else 40+r-16)
    k.e(["v_lshrrev_b32 v2, 5, v0",f"v_mul_u32_u24 v2, {ST_TT}, v2","v_and_b32 v60, 31, v0","v_lshlrev_b32 v60, 4, v60","v_add_u32 v2, v2, v60",f"v_add_u32 v2, {STL}, v2"])
    for u in range(4):
        k.e([f"v_add_u32 v{BX+u}, {u*T16}, v1", f"v_add_u32 v{BH+u}, {HO+u*T16}, v1"])
    k.e(["s_lshr_b32 s21, s3, 1","s_lshl_b32 s21, s21, 10","s_and_b32 s17, s3, 1","s_lshl_b32 s17, s17, 3","s_add_u32 s21, s21, s17"])
    for u in range(4): k.e(f"v_add_u32 v{HW+u}, s21, v{BH+u}")
    k.e([f"v_lshlrev_b32 v{CSA}, 4, v3","s_lshl_b32 s21, s3, 6",f"s_add_u32 s21, s21, {XO}",f"v_add_u32 v{CSA}, s21, v{CSA}"])
    k.e([f"s_mul_i32 s26, s12, {4*T16}",f"s_mul_i32 s21, s13, {AF_SIZE}","s_add_u32 s26, s26, s21",f"s_add_u32 s26, s26, {B+L_PART}",
         "s_lshl_b32 s21, s3, 10","s_add_u32 s28, s26, s21",
         "s_lshr_b32 s21, s3, 1","s_add_u32 s21, s21, 16","s_lshl_b32 s21, s21, 10","s_and_b32 s17, s3, 1","s_lshl_b32 s17, s17, 3","s_add_u32 s21, s21, s17","s_add_u32 s30, s26, s21"])
    k.e([f"v_mov_b32 v{ONE}, 1.0",f"v_mov_b32 v{ONE+1}, 1.0"])
    sf=[("lg",f"ds_read_b128 v[{STR(4*j)}:{STR(4*j)+3}], v2 offset:{512*j}","ST") for j in range(9)]+[("lgwait","ST"),f"v_add_f32 v60, v{STR(0)}, v{STR(2)}",f"v_add_f32 v62, v{STR(1)}, v{STR(3)}"]
    sf+=[f"v_mul_f32 v61, v{STR(0)}, v{STR(0)}",f"v_fmac_f32 v61, v{STR(2)}, v{STR(2)}"]
    for b in range(2,18): sf+=[f"v_add_f32 v60, v60, v{STR(2*b)}",f"v_add_f32 v62, v62, v{STR(2*b+1)}",f"v_fmac_f32 v61, v{STR(2*b)}, v{STR(2*b)}"]
    sf+=[f"v_fmac_f32 v62, {fbits(1.0/32)}, v61",f"v_mul_f32 v61, {fbits(1.0/576)}, v60","v_fma_f32 v62, -v60, v61, v62","v_max_f32 v62, 0, v62","v_mov_b32 v60, v61"]
    sf+=[f"v_mov_b32 v63, {fbits(1e-5)}",f"v_fmac_f32 v63, {fbits(1.0/576)}, v62",f"v_rsq_f32 v{RS}, v63",f"v_sub_f32 v{NM}, 0, v60"]
    def bc4(r):
        return [f"v_mov_b32 v{r+2}, v{r}","s_nop 1",f"v_permlane32_swap_b32 v{r}, v{r+2}",f"v_mov_b32 v{r+1}, v{r}",f"v_mov_b32 v{r+3}, v{r+2}","s_nop 1",
                f"v_permlane16_swap_b32 v{r}, v{r+1}",f"v_permlane16_swap_b32 v{r+2}, v{r+3}"]
    sf+=["s_nop 0"]+bc4(NM)+bc4(RS)+["s_nop 1"]+[f"v_mul_f32 v{C1+u}, {fbits(-LOG2E)}, v{RS+u}" for u in range(4)]
    k.stamp(2)
    k.vm_wait(("X",5)); k.e("s_barrier"); k.stamp(3)
    def bjX(u,kap): return f"ds_read_b128 {st.breg(u,kap)}, v{BX+u} offset:{kap*1024}"
    def bjH(u,kap): return f"ds_read_b128 {st.breg(u,kap)}, v{BH+u} offset:{kap*1024}"
    def cs_read(rnd): return [("lg",f"ds_read_b128 v[{CS+4*(rnd&1)}:{CS+4*(rnd&1)+3}], v{CSA} offset:{rnd*256}",("CS",rnd))]
    def silu(a,rnd):
        if 'nosilu' in X: return []
        c=CS+4*(rnd&1); f=[("lgwait",("CS",rnd))]
        for h in range(2):
            us=(2*h,2*h+1); R8=[(u,i) for u in us for i in range(4)]
            t=lambda u,i: TMP+8*h+4*(u&1)+i
            if 'pk' not in X.split('_'):
                f+=[f"v_fmac_f32 v{a+4*u+i}, v{c+i}, v{NM+u}" for u,i in R8]
                f+=[f"v_mul_f32 v{t(u,i)}, v{a+4*u+i}, v{C1+u}" for u,i in R8]
                f+=[f"v_exp_f32 v{t(u,i)}, v{t(u,i)}" for u,i in R8]
                f+=[f"v_add_f32 v{t(u,i)}, 1.0, v{t(u,i)}" for u,i in R8]
                f+=[f"v_rcp_f32 v{t(u,i)}, v{t(u,i)}" for u,i in R8]
                f+=[f"v_mul_f32 v{a+4*u+i}, v{a+4*u+i}, v{t(u,i)}" for u,i in R8]
            else:
                R4=[(u,i) for u in us for i in (0,2)]
                def bc(base,u):
                    r=base+u
                    return (f"v[{r}:{r+1}]",0) if r%2==0 else (f"v[{r-1}:{r}]",1)
                for u,i in R4:
                    p,sel=bc(NM,u)
                    f.append(f"v_pk_fma_f32 v[{a+4*u+i}:{a+4*u+i+1}], v[{c+i}:{c+i+1}], {p}, v[{a+4*u+i}:{a+4*u+i+1}] op_sel:[0,{sel},0] op_sel_hi:[1,{sel},1]")
                for u,i in R4:
                    p,sel=bc(C1,u)
                    f.append(f"v_pk_mul_f32 v[{t(u,i)}:{t(u,i)+1}], v[{a+4*u+i}:{a+4*u+i+1}], {p} op_sel:[0,{sel}] op_sel_hi:[1,{sel}]")
                f+=[f"v_exp_f32 v{t(u,i)}, v{t(u,i)}" for u,i in R8]
                f+=[f"v_pk_add_f32 v[{t(u,i)}:{t(u,i)+1}], v[{t(u,i)}:{t(u,i)+1}], v[{ONE}:{ONE+1}]" for u,i in R4]
                f+=[f"v_rcp_f32 v{t(u,i)}, v{t(u,i)}" for u,i in R8]
                f+=[f"v_pk_mul_f32 v[{a+4*u+i}:{a+4*u+i+1}], v[{a+4*u+i}:{a+4*u+i+1}], v[{t(u,i)}:{t(u,i)+1}]" for u,i in R4]
            for u in us:
                f+=[f"v_cvt_pk_bf16_f32 v{PK+2*u}, v{a+4*u}, v{a+4*u+1}",f"v_cvt_pk_bf16_f32 v{PK+2*u+1}, v{a+4*u+2}, v{a+4*u+3}"]
            for u in us:
                f.append(("lg",f"ds_write_b64 v{HW+u}, v[{PK+2*u}:{PK+2*u+1}] offset:{rnd*2048}","HW"))
        return f
    md='' if 'nosc1' in X else ' sc1'
    def pack(a,half):
        f=[]
        for u in range(4): f+=[f"v_mul_f32 v{a+4*u+i}, v{a+4*u+i}, v{RS+u}" for i in range(4)]
        for u in range(4): f+=[f"v_cvt_pk_bf16_f32 v{PK+4*u+2*half}, v{a+4*u}, v{a+4*u+1}",f"v_cvt_pk_bf16_f32 v{PK+4*u+2*half+1}, v{a+4*u+2}, v{a+4*u+3}"]
        return f
    def store_pair(m):
        f=[]
        for u in range(4):
            f+=[f"s_add_u32 s31, s28, {u*T16+m*4096}"]
            if 'nost' not in X: f+=[("vm",f"buffer_store_dwordx4 v[{PK+4*u}:{PK+4*u+3}], v1, {LS}, s31 offen{md}",None)]
        return f+["s_nop 0"]
    def store_single():
        f=[]
        for u in range(4):
            f+=[f"s_add_u32 s31, s30, {u*T16}"]
            if 'nost' not in X: f+=[("vm",f"buffer_store_dwordx2 v[{PK+4*u}:{PK+4*u+1}], v1, {LS}, s31 offen",None)]
        return f
    kap=list(range(18)); LA=2; FS=6; BUD=int(os.environ.get('BUD45','8'))
    acc=lambda a:(a,a+4,a+8,a+12)
    A2=[AX,AY]
    post={}
    at={6-LA:[("vmwait",("X",11)),"s_barrier"],12-LA:[("vmwait","CSD"),"s_barrier"]}
    if 't0' in X:
        at={3:[("call",lambda:k.stamp(5))],4:[("vmwait",("X",11)),"s_barrier",("call",lambda:k.stamp(6))],10:[("call",lambda:k.stamp(7)),("vmwait","CSD"),"s_barrier",("call",lambda:k.stamp(8))],16:[("call",lambda:k.stamp(9))]}
    st.tile(acc(AX),kap,us=(0,1,2,3),bjit=bjX,la=LA,boost=1,hold=6,burst=8,post=post,at=at,fillers=sf+cs_read(0),fill_start=44,budget=BUD); k.stamp(4)
    for r in range(1,9):
        f=cs_read(r)+silu(A2[(r-1)&1],r-1)
        if r==8:
            f+=[("lgwait","HW"),"s_barrier"]
            for s in range(LA):
                for u in range(4): f.append(("lg",bjH(u,s),("B",u,s)))
        st.tile(acc(A2[r&1]),kap,us=(0,1,2,3),fillers=f,fill_start=FS,budget=BUD)
        if r in (1,4,8) and not ('lat' in X and r!=8) and 'probe' not in X and 't0' not in X: k.stamp({1:5,4:6,8:7}[r])
    f=silu(A2[0],8)+[("lgwait","HW"),"s_barrier"]
    st.tile(acc(AY),kap,us=(0,1,2,3),fillers=f,bjit=bjH,la=LA,bpre=LA,flush_at=16,fill_start=FS,budget=BUD); k.stamp(8) if ('probe' not in X and 't0' not in X) else None
    if 'noext' not in X: st.add_quads([CS,CS+4,TMP,TMP+4,TMP+8,TMP+12,224,228,232,236])
    cur=[AX,AY]
    for t in range(1,9):
        prev=cur[t&1]; now=cur[(t+1)&1]
        tp=t-1
        f=pack(prev,tp&1)
        if tp&1: f+=store_pair(tp>>1)
        if 'lat' in X and t==4: f+=[("call",lambda:k.stamp(5)),("call",lambda:k.vm_wait_all()),("call",lambda:k.stamp(6))]
        if t==6: f+=[("call",lambda: k.code_prefetch("k1_qkv0_kernel","k2_attn_codeend",4,240)),("call",lambda: k.code_prefetch("k6_red0_kernel","k6_red_codeend",4,246))]
        st.tile(acc(now),kap,us=(0,1,2,3),fillers=f,fill_start=FS,budget=BUD,boost=1)
        if t==4 and 't0' not in X: k.stamp(9)
    k.e("s_nop 6")
    last=cur[(8+1)&1]
    for it in pack(last,0)+store_single(): st.place(it)
    k.stamp(10); k.stamp_dump()
    k.label(END); k.e("s_endpgm")
    return k,256,256,163840
```

```python
from asmlib import *
from layout import *
from k0 import fbits, ws_srd, srd, layer_srd
LS="s[44:47]"
def gen_k6():
    k=Kern("k6_red", nvgpr=64, nsgpr=64)
    k.aliases=[(f"k6_red{l}_kernel",[f"s_mov_b32 s34, {hex(l*LSTRIDE)}"]) for l in range(2)]
    B=CUR; END=k.name+"_end"
    k.e([f"s_cmp_ge_u32 s2, 256", f"s_cbranch_scc1 {END}",
         "s_load_dwordx2 s[4:5], s[0:1], 64","s_load_dwordx2 s[6:7], s[0:1], 48"]); k.stamp(0)
    k.e(["v_lshrrev_b32 v1, 6, v0","v_and_b32 v2, 63, v0","s_nop 0","v_readfirstlane_b32 s3, v1",
         "v_and_b32 v3, 7, v2",
         "v_lshrrev_b32 v4, 3, v0",
         "v_lshrrev_b32 v5, 2, v4","v_and_b32 v6, 3, v4",
         "s_lshr_b32 s12, s2, 1","s_and_b32 s13, s2, 1",
         "v_lshlrev_b32 v7, 10, v5","v_lshlrev_b32 v8, 4, v6","s_lshl_b32 s14, s13, 3","v_add_u32 v8, s14, v8","v_add_u32 v8, v8, v3","v_lshlrev_b32 v8, 4, v8","v_add_u32 v7, v7, v8",
         "s_mul_i32 s15, s12, 18432",
         "s_waitcnt lgkmcnt(0)"]); k.stamp(1)
    layer_srd(k)
    k.e(f"s_add_u32 s16, s15, {B+L_X1}")
    k.e("buffer_load_dwordx4 v[12:15], v7, s[44:47], s16 offen")
    for s in range(8):
        k.e([f"s_add_u32 s16, s15, {B+L_PART+s*AF_SIZE}", f"buffer_load_dwordx4 v[{16+4*s}:{19+4*s}], v7, s[44:47], s16 offen"])
    A=48
    k.stamp(2)
    k.e("s_waitcnt vmcnt(8)"); k.stamp(3)
    for j in range(4): k.e([f"v_lshlrev_b32 v{A+2*j}, 16, v{12+j}", f"v_and_b32 v{A+2*j+1}, 0xffff0000, v{12+j}"])
    for s in range(8):
        k.e(f"s_waitcnt vmcnt({7-s})")
        for j in range(4):
            k.e([f"v_lshlrev_b32 v9, 16, v{16+4*s+j}", f"v_and_b32 v10, 0xffff0000, v{16+4*s+j}", f"v_add_f32 v{A+2*j}, v{A+2*j}, v9", f"v_add_f32 v{A+2*j+1}, v{A+2*j+1}, v10"])
    k.stamp(4)
    for j in range(4): k.e(f"v_cvt_pk_bf16_f32 v{56+j}, v{A+2*j}, v{A+2*j+1}")
    L0=k.name+"_l0"; FIN=k.name+"_fin"
    k.e(["s_cmp_eq_u32 s34, 0",f"s_cbranch_scc1 {L0}"])
    if True:
        srd(k,20,(6,7),S*D*2)
        k.e(["s_lshl_b32 s16, s12, 4","s_add_u32 s16, s16, s14","v_add_u32 v9, s16, v3","v_mul_u32_u24 v9, 1152, v9","v_lshlrev_b32 v10, 6, v5","v_add_u32 v9, v9, v10","v_lshlrev_b32 v10, 3, v6","v_add_u32 v9, v9, v10",
             "buffer_store_dwordx2 v[56:57], v9, s[20:23], 0 offen","buffer_store_dwordx2 v[58:59], v9, s[20:23], 0 offen offset:32",f"s_branch {FIN}"])
    k.label(L0)
    if True:
        k.e([f"s_add_u32 s16, s15, {B+L_X2}","buffer_store_dwordx4 v[56:59], v7, s[44:47], s16 offen"])
        for j in range(4): k.e([f"v_lshlrev_b32 v{A+2*j}, 16, v{56+j}", f"v_and_b32 v{A+2*j+1}, 0xffff0000, v{56+j}"])
        def reduce72(v,ldsoff):
            k.e(["s_nop 1",f"v_add_f32_dpp v{v}, v{v}, v{v} row_ror:8 row_mask:0xf bank_mask:0xf","s_nop 1",
                 f"v_mov_b32 v11, v{v}","s_nop 1",f"v_permlane16_swap_b32 v{v}, v11","s_nop 1",f"v_add_f32 v{v}, v{v}, v11",
                 f"v_mov_b32 v11, v{v}","s_nop 1",f"v_permlane32_swap_b32 v{v}, v11","s_nop 1",f"v_add_f32 v{v}, v{v}, v11",
                 "s_lshl_b32 s17, s3, 5","v_lshlrev_b32 v11, 2, v3","v_add_u32 v9, s17, v11",f"ds_write_b32 v9, v{v} offset:{ldsoff}","s_waitcnt lgkmcnt(0)","s_barrier"])
            for w in range(9): k.e(f"ds_read_b32 v{20+w}, v11 offset:{ldsoff+32*w}")
            k.e("s_waitcnt lgkmcnt(0)")
            k.e(f"v_add_f32 v{v}, v20, v21")
            for w in range(2,9): k.e(f"v_add_f32 v{v}, v{v}, v{20+w}")
        k.e(f"v_add_f32 v30, v{A}, v{A+1}")
        for i in range(2,8): k.e(f"v_add_f32 v30, v30, v{A+i}")
        reduce72(30,0)
        k.e(f"v_mul_f32 v30, {fbits(1.0/576)}, v30")
        for i in range(8): k.e(f"v_sub_f32 v{A+i}, v{A+i}, v30")
        k.e(f"v_mul_f32 v31, v{A}, v{A}")
        for i in range(1,8): k.e(f"v_fmac_f32 v31, v{A+i}, v{A+i}")
        reduce72(31,512)
        k.e([f"v_mov_b32 v32, {fbits(1e-5)}", f"v_fmac_f32 v32, {fbits(1.0/576)}, v31","v_rsq_f32 v32, v32","s_nop 0"])
        for i in range(8): k.e(f"v_mul_f32 v{A+i}, v{A+i}, v32")
        for j in range(4): k.e(f"v_cvt_pk_bf16_f32 v{60+j}, v{A+2*j}, v{A+2*j+1}")
        k.e(["s_lshr_b32 s16, s12, 1",f"s_mul_i32 s16, s16, {AFB}",f"s_add_u32 s16, s16, {B+L_XN2}","s_and_b32 s17, s12, 1","s_lshl_b32 s17, s17, 4","s_add_u32 s17, s17, s14",
             "v_add_u32 v9, s17, v3","v_and_b32 v10, 1, v6","v_lshlrev_b32 v10, 5, v10","v_add_u32 v9, v9, v10","v_lshlrev_b32 v9, 4, v9","v_lshrrev_b32 v10, 1, v6","v_lshlrev_b32 v10, 3, v10","v_add_u32 v9, v9, v10",
             "v_lshlrev_b32 v10, 11, v5","v_add_u32 v9, v9, v10",
             "buffer_store_dwordx2 v[60:61], v9, s[44:47], s16 offen","buffer_store_dwordx2 v[62:63], v9, s[44:47], s16 offen offset:1024"])
    k.label(FIN)
    import os
    if os.environ.get("OFFT"):
        k.e(["s_cmp_lg_u32 s2, 0","s_cbranch_scc1 k6_nt","s_cmp_eq_u32 s34, 0","s_cbranch_scc1 k6_nt","s_load_dwordx2 s[60:61], s[0:1], 56","s_memrealtime s[62:63]","s_waitcnt lgkmcnt(0)","v_mov_b32 v60, 0","v_mov_b32 v61, s62","global_store_dword v60, v61, s[60:61] offset:44","k6_nt:"])
    k.stamp(5); k.stamp_dump()
    k.label(END); k.e("s_endpgm")
    return k,256,576,1024
```

```python
from asmlib import *
from layout import *
import struct
def fbits(x): return "0x%08x"%struct.unpack("<I",struct.pack("<f",x))[0]

def ws_srd(k, d=8, ptr=(4,5)):
    k.e([f"s_mov_b32 s{d}, s{ptr[0]}", f"s_mov_b32 s{d+1}, s{ptr[1]}", f"s_mov_b32 s{d+2}, {hex(WS_SIZE)}", f"s_mov_b32 s{d+3}, 0x20000"])
def layer_srd(k, d=44, ptr=(4,5), off="s34"):
    k.e([f"s_add_u32 s{d}, s{ptr[0]}, {off}", f"s_addc_u32 s{d+1}, s{ptr[1]}, 0", f"s_mov_b32 s{d+2}, {hex(2*LSTRIDE)}", f"s_mov_b32 s{d+3}, 0x20000"])
def layer_aliases(k, base):
    k.aliases=[(f"{base}{l}_kernel",[f"s_mov_b32 s34, {hex(l*LSTRIDE)}"]) for l in range(2)]
def srd(k, d, ptr, size):
    k.e([f"s_mov_b32 s{d}, s{ptr[0]}", f"s_mov_b32 s{d+1}, s{ptr[1]}", f"s_mov_b32 s{d+2}, {hex(size)}", f"s_mov_b32 s{d+3}, 0x20000"])

def cross_half_add(k, v, t):
    k.e([f"v_mov_b32 v{t}, v{v}", "s_nop 1", f"v_permlane32_swap_b32 v{v}, v{t}", "s_nop 1", f"v_add_f32 v{v}, v{v}, v{t}"])

def ln_tile_task(k, layer_tag):
    pass

NWG0=64+72+72+9+64+32
import os
ROT='rot' in os.environ.get('X45','').split('_')
def gen_k0():
    k=Kern("k0_prep_kernel", nvgpr=128, nsgpr=64)
    END="k0_end"
    k.e([f"s_cmp_ge_u32 s2, {NWG0}", f"s_cbranch_scc1 {END}"])
    if 'noself' not in os.environ.get('X0',''):
        k.e(["s_getpc_b64 s[50:51]","v_lshlrev_b32 v100, 6, v0","global_load_dword v101, v100, s[50:51]"])
    if os.environ.get("OFFT"):
        k.nsgpr=100
        k.e(["s_cmp_lg_u32 s2, 0","s_cbranch_scc1 k0_nt","s_load_dwordx2 s[60:61], s[0:1], 56","s_memrealtime s[62:63]","s_waitcnt lgkmcnt(0)","s_add_u32 s60, s60, 5120","s_addc_u32 s61, s61, 0","v_mov_b32 v60, 0","v_mov_b32 v61, s62","global_store_dword v60, v61, s[60:61]","k0_nt:"])
    k.e(["s_load_dwordx2 s[4:5], s[0:1], 64",
         "s_load_dwordx2 s[12:13], s[0:1], 0",
         "s_load_dwordx2 s[16:17], s[0:1], 8",
         "s_load_dwordx2 s[20:21], s[0:1], 16",
         "s_load_dwordx2 s[24:25], s[0:1], 32",
         "s_load_dwordx2 s[28:29], s[0:1], 40",
         "v_lshrrev_b32 v1, 6, v0", "v_and_b32 v0, 63, v0", "s_nop 0", "v_readfirstlane_b32 s3, v1",
         ]); k.stamp(0)
    k.e("s_waitcnt lgkmcnt(0)"); k.stamp(1)
    ws_srd(k,8,(4,5))
    k.e(["v_lshlrev_b32 v1, 4, v0",
         "v_and_b32 v2, 31, v0",
         "v_lshrrev_b32 v3, 5, v0",
         "v_mov_b32 v4, 0x3f803f80"])
    k.e(["s_cmp_lt_u32 s2, 64","s_cbranch_scc1 k0_x",
         "s_cmp_lt_u32 s2, 217","s_cbranch_scc1 k0_w",
         "s_cmp_lt_u32 s2, 281","s_cbranch_scc1 k0_qkv"])
    k.e(["s_getpc_b64 s[50:51]"]); k.label("k0_pc")
    k.e(["s_add_u32 s50, s50, k1_qkv0_kernel-k0_pc","s_addc_u32 s51, s51, (k1_qkv0_kernel-k0_pc)>>32",
         "s_sub_u32 s52, s2, 281","s_lshr_b32 s52, s52, 3","s_lshl_b32 s52, s52, 2","s_add_u32 s52, s52, s3","s_lshl_b32 s52, s52, 10"])
    for j in range(4):
        k.e([f"s_add_u32 s53, s52, {j*16384}","s_min_u32 s53, s53, k6_red_codeend-k1_qkv0_kernel-1024","v_add_u32 v5, s53, v1",f"global_load_dwordx4 v[{8+4*j}:{11+4*j}], v5, s[50:51]"])
    k.e(f"s_branch {END}")
    k.label("k0_x")
    srd(k,36,(12,13),S*D*2)
    k.e(["s_lshl_b32 s14, s2, 5","v_add_u32 v5, s14, v2","s_movk_i32 s15, 1152","v_mul_lo_u32 v5, v5, s15","v_lshlrev_b32 v6, 3, v3","v_add_u32 v5, v5, v6",
         "s_lshl_b32 s18, s3, 5"])
    X=16
    for m in range(9):
        k.e(f"s_add_u32 s19, s18, {m*128}")
        k.e(f"buffer_load_dwordx2 v[{X+4*m}:{X+4*m+1}], v5, s[36:39], s19 offen")
        k.e(f"buffer_load_dwordx2 v[{X+4*m+2}:{X+4*m+3}], v5, s[36:39], s19 offen offset:16")
    k.e([f"s_mul_i32 s22, s2, {AFB}","s_lshl_b32 s23, s3, 10","s_add_u32 s22, s22, s23"])
    k.stamp(2)
    k.e(["s_waitcnt vmcnt(0)"]); k.stamp(3)
    k.e(["v_lshrrev_b32 v6, 4, v2","v_mul_u32_u24 v6, 18432, v6","v_and_b32 v7, 15, v2","v_lshlrev_b32 v8, 4, v3","v_add_u32 v7, v7, v8","v_lshlrev_b32 v7, 4, v7","v_add_u32 v6, v6, v7",
         f"s_mul_i32 s26, s2, {AFB}","s_lshr_b32 s27, s3, 1","s_lshl_b32 s27, s27, 10","s_add_u32 s26, s26, s27","s_and_b32 s27, s3, 1","s_lshl_b32 s27, s27, 3","s_add_u32 s26, s26, s27",f"s_add_u32 s26, s26, {WS_X0}"])
    k.e(["v_mov_b32 v7, 0","v_mov_b32 v8, 0"])
    for m in range(9):
        for j in range(4): k.e([f"v_dot2c_f32_bf16 v7, v{X+4*m+j}, v4",f"v_dot2c_f32_bf16 v8, v{X+4*m+j}, v{X+4*m+j}"])
    k.e("s_nop 2")
    cross_half_add(k,7,9); cross_half_add(k,8,9)
    k.e(["v_lshlrev_b32 v9, 3, v2","s_lshl_b32 s23, s3, 8","v_add_u32 v10, s23, v9","v_mov_b32 v12, v7","v_mov_b32 v13, v8","ds_write_b64 v10, v[12:13]"])
    for m in range(9):
        k.e(f"buffer_store_dwordx2 v[{X+4*m}:{X+4*m+1}], v6, s[8:11], s26 offen")
        k.e(f"buffer_store_dwordx2 v[{X+4*m+2}:{X+4*m+3}], v6, s[8:11], s26 offen offset:512")
        k.e("s_add_u32 s26, s26, 2048")
    k.e(["s_waitcnt lgkmcnt(0)","s_barrier",
         "ds_read_b64 v[12:13], v9","ds_read_b64 v[14:15], v9 offset:256","ds_read_b64 v[124:125], v9 offset:512","ds_read_b64 v[126:127], v9 offset:768","s_waitcnt lgkmcnt(0)",
         "v_add_f32 v12, v12, v14","v_add_f32 v13, v13, v15","v_add_f32 v124, v124, v126","v_add_f32 v125, v125, v127","v_add_f32 v12, v12, v124","v_add_f32 v13, v13, v125",
         f"v_mul_f32 v11, {fbits(1.0/576)}, v12",
         f"v_mul_f32 v13, {fbits(1.0/576)}, v13","v_fma_f32 v13, -v11, v11, v13","v_max_f32 v13, 0, v13",f"v_add_f32 v13, {fbits(1e-5)}, v13","v_rsq_f32 v13, v13"])
    k.stamp(4)
    Y=52
    for i in range(36):
        k.e([f"v_lshlrev_b32 v{Y+2*i}, 16, v{X+i}", f"v_and_b32 v{Y+2*i+1}, 0xffff0000, v{X+i}",
             f"v_sub_f32 v{Y+2*i}, v{Y+2*i}, v11", f"v_sub_f32 v{Y+2*i+1}, v{Y+2*i+1}, v11"])
    k.stamp(5)
    for i in range(36):
        k.e([f"v_mul_f32 v{Y+2*i}, v{Y+2*i}, v13", f"v_mul_f32 v{Y+2*i+1}, v{Y+2*i+1}, v13", f"v_cvt_pk_bf16_f32 v{X+i}, v{Y+2*i}, v{Y+2*i+1}"])
    for m in range(9):
        k.e(f"s_add_u32 s19, s22, {WS_XN0+m*4096}")
        k.e(f"buffer_store_dwordx4 v[{X+4*m}:{X+4*m+3}], v1, s[8:11], s19 offen")
    k.e(f"s_branch {END}")
    k.label("k0_w")
    if 'now' in os.environ.get('X0',''): k.e(f"s_branch {END}")
    k.e(["v_lshrrev_b32 v5, 3, v0","v_and_b32 v6, 7, v0","v_lshlrev_b32 v6, 4, v6",
         "s_mul_i32 s30, s3, 18432",
         "v_lshrrev_b32 v8, 2, v0","v_and_b32 v8, 3, v8",
         "v_lshlrev_b32 v9, 2, v3","v_add_u32 v8, v8, v9","v_lshlrev_b32 v8, 7, v8",
         "v_lshrrev_b32 v9, 4, v0","v_and_b32 v9, 1, v9","v_lshlrev_b32 v9, 5, v9","v_add_u32 v8, v8, v9",
         "v_and_b32 v9, 3, v0","v_lshlrev_b32 v9, 3, v9","v_add_u32 v8, v8, v9","v_add_u32 v7, s30, v8"])
    k.e(["s_cmp_lt_u32 s2, 136","s_cbranch_scc1 k0_w1","s_cmp_lt_u32 s2, 208","s_cbranch_scc1 k0_w2","s_branch k0_wo"])
    def process_units(k, dst_calc, colsum=False):
        k.e("s_waitcnt vmcnt(0)")
        if colsum: k.e(["v_mov_b32 v12, 0","v_mov_b32 v13, 0"])
        for m in range(9):
            for f in range(2):
                b=16+8*(m%2)*2+f*8
                b=16+((2*m+f)%8)*4
                k.e(f"ds_read_b64_tr_b16 v[{b}:{b+1}], v7 offset:{m*2048+f*64}")
                k.e(f"ds_read_b64_tr_b16 v[{b+2}:{b+3}], v7 offset:{m*2048+f*64+1024}")
                dst_calc(m,f)
                k.e("s_waitcnt lgkmcnt(0)")
                k.e(f"buffer_store_dwordx4 v[{b}:{b+3}], v1, s[8:11], s19 offen")
                if colsum:
                    for j in range(4): k.e(f"v_dot2c_f32_bf16 v{12+f}, v{b+j}, v4")
    def tr16_addr():
        k.e(["s_mul_i32 s31, s3, 20480","v_lshrrev_b32 v15, 4, v0","v_lshlrev_b32 v15, 2, v15","v_lshrrev_b32 v16, 2, v0","v_and_b32 v16, 3, v16","v_add_u32 v15, v15, v16","v_lshlrev_b32 v15, 7, v15",
             "v_and_b32 v16, 3, v0","v_lshlrev_b32 v16, 3, v16","v_add_u32 v15, v15, v16","v_add_u32 v17, s31, v15"])
    k.label("k0_w1")
    srd(k,36,(24,25),D*F*2)
    tr16_addr()
    k.e(["s_sub_u32 s14, s2, 64","s_movk_i32 s15, 9216","v_mul_lo_u32 v10, v5, s15","v_add_u32 v10, v10, v6",
         "s_lshl_b32 s18, s14, 7","s_mul_i32 s19, s3, %d"%(32*9216),"s_add_u32 s18, s18, s19",
         "s_mov_b32 s26, s31","s_mov_b32 s23, s3"])
    k.label("k0_w1l")
    for q in range(4):
        k.e([f"s_add_u32 m0, s26, {q*1024}",f"s_add_u32 s19, s18, {q*8*9216}","buffer_load_dwordx4 v10, s[36:39], s19 offen lds"])
    k.e(["s_add_u32 s26, s26, 4096","s_add_u32 s18, s18, %d"%(128*9216),"s_add_u32 s23, s23, 4","s_cmp_lt_u32 s23, 18","s_cbranch_scc1 k0_w1l"])
    assert all((cb*57>>9)==cb//9 for cb in range(72))
    k.e(["s_mul_i32 s22, s14, 57","s_lshr_b32 s22, s22, 9","s_mul_i32 s23, s22, 9","s_sub_u32 s23, s14, s23",
         f"s_mul_i32 s26, s22, {4*W12_WAVE}","s_mul_i32 s27, s23, 18432","s_add_u32 s26, s26, s27",f"s_add_u32 s26, s26, {WS_W12}",
         "s_and_b32 s28, s22, 1" if ROT else "s_mov_b32 s28, 0","s_mul_i32 s28, s28, 9",
         "v_mov_b32 v40, 0","v_mov_b32 v41, 0","v_mov_b32 v42, 0","v_mov_b32 v43, 0","s_mov_b32 s27, s3","s_waitcnt vmcnt(0)"])
    k.label("k0_w1p")
    for f in range(4):
        k.e([f"ds_read_b64_tr_b16 v[{20+4*f}:{21+4*f}], v17 offset:{f*32}",f"ds_read_b64_tr_b16 v[{22+4*f}:{23+4*f}], v17 offset:{f*32+2048}"])
    k.e("s_waitcnt lgkmcnt(0)")
    k.e(["s_add_u32 s29, s27, s28","s_sub_u32 s33, s29, 18","s_cmp_ge_u32 s29, 18","s_cselect_b32 s29, s33, s29","s_lshl_b32 s29, s29, 10","s_add_u32 s29, s29, s26"])
    for f in range(4):
        k.e([f"s_add_u32 s19, s29, {f*W12_WAVE}",f"buffer_store_dwordx4 v[{20+4*f}:{23+4*f}], v1, s[8:11], s19 offen"])
        for j in range(4): k.e(f"v_dot2c_f32_bf16 v{40+f}, v{20+4*f+j}, v4")
    k.e(["v_add_u32 v17, 4096, v17","s_add_u32 s27, s27, 4","s_cmp_lt_u32 s27, 18","s_cbranch_scc1 k0_w1p","s_nop 2"])
    for f in range(4):
        k.e([f"v_mov_b32 v44, v{40+f}","s_nop 1",f"v_permlane16_swap_b32 v{40+f}, v44","s_nop 1",f"v_add_f32 v{40+f}, v{40+f}, v44"])
        cross_half_add(k,40+f,44)
    k.e(["v_lshrrev_b32 v45, 4, v0","v_cmp_eq_u32 vcc, 1, v45","s_nop 1","v_cndmask_b32 v40, v40, v41, vcc","v_cmp_eq_u32 vcc, 2, v45","s_nop 1","v_cndmask_b32 v40, v40, v42, vcc","v_cmp_eq_u32 vcc, 3, v45","s_nop 1","v_cndmask_b32 v40, v40, v43, vcc",
         "v_lshlrev_b32 v14, 2, v0","v_add_u32 v15, s31, v14","s_waitcnt vmcnt(0)","ds_write_b32 v15, v40","s_waitcnt lgkmcnt(0)","s_barrier",
         "s_cmp_lg_u32 s3, 0",f"s_cbranch_scc1 {END}",
         "ds_read_b32 v16, v14","ds_read_b32 v17, v14 offset:20480","ds_read_b32 v18, v14 offset:40960","ds_read_b32 v19, v14 offset:61440","s_waitcnt lgkmcnt(0)",
         "v_add_f32 v16, v16, v17","v_add_f32 v18, v18, v19","v_add_f32 v16, v16, v18",
         "s_lshl_b32 s19, s14, 8",f"s_add_u32 s19, s19, {WS_CS1}","buffer_store_dword v16, v14, s[8:11], s19 offen",
         f"s_branch {END}"])
    k.label("k0_w2")
    srd(k,36,(28,29),F*D*2)
    tr16_addr()
    assert all((x*57>>10)==x//18 for x in range(144))
    k.e(["s_sub_u32 s14, s2, 136","s_lshl_b32 s14, s14, 1","s_lshr_b32 s15, s3, 1","s_add_u32 s14, s14, s15",
         "s_and_b32 s27, s3, 1","s_mul_i32 s27, s27, 5",
         "s_movk_i32 s15, 1152","v_mul_lo_u32 v10, v5, s15","v_add_u32 v10, v10, v6",
         "s_mul_i32 s18, s14, %d"%(32*1152),"s_lshl_b32 s19, s27, 7","s_add_u32 s18, s18, s19",
         "s_and_b32 s33, s3, 1","s_mul_i32 s33, s33, 4","s_add_u32 s33, s33, 5",
         "s_mov_b32 s26, s31","s_mov_b32 s23, s27"])
    k.label("k0_w2l")
    for q in range(4):
        k.e([f"s_add_u32 m0, s26, {q*1024}",f"s_add_u32 s19, s18, {q*8*1152}","buffer_load_dwordx4 v10, s[36:39], s19 offen lds"])
    k.e(["s_add_u32 s26, s26, 4096","s_add_u32 s18, s18, 128","s_add_u32 s23, s23, 1","s_cmp_lt_u32 s23, s33","s_cbranch_scc1 k0_w2l"])
    k.e(["s_mul_i32 s22, s14, 57","s_lshr_b32 s22, s22, 10","s_mul_i32 s23, s22, 18","s_sub_u32 s23, s14, s23",
         f"s_mul_i32 s26, s22, {4*W12_WAVE}","s_add_u32 s23, s23, 162","s_lshl_b32 s23, s23, 10","s_add_u32 s26, s26, s23",f"s_add_u32 s26, s26, {WS_W12}","s_waitcnt vmcnt(0)"])
    k.label("k0_w2p")
    for f in range(4):
        k.e([f"ds_read_b64_tr_b16 v[{20+4*f}:{21+4*f}], v17 offset:{f*32}",f"ds_read_b64_tr_b16 v[{22+4*f}:{23+4*f}], v17 offset:{f*32+2048}"])
    for f in range(4):
        k.e(["s_lshl_b32 s28, s27, 1",f"s_add_u32 s28, s28, {f>>1}","s_and_b32 s28, s28, 3","s_lshr_b32 s29, s27, 1","s_lshl_b32 s29, s29, 1",f"s_add_u32 s29, s29, {f&1}",
             "s_cmp_eq_u32 s27, 8",f"s_cselect_b32 s28, {f}, s28","s_cselect_b32 s29, 8, s29",
             f"s_mul_i32 s28, s28, {W12_WAVE}","s_mul_i32 s29, s29, 18432","s_add_u32 s28, s28, s29",f"s_add_u32 s{40+f}, s28, s26"])
    k.e("s_waitcnt lgkmcnt(0)")
    for f in range(4): k.e(f"buffer_store_dwordx4 v[{20+4*f}:{23+4*f}], v1, s[8:11], s{40+f} offen")
    k.e(["v_add_u32 v17, 4096, v17","s_add_u32 s27, s27, 1","s_cmp_lt_u32 s27, s33","s_nop 0","s_cbranch_scc1 k0_w2p",f"s_branch {END}"])
    k.label("k0_wo")
    srd(k,36,(20,21),D*D*2)
    k.e(["s_sub_u32 s14, s2, 208","s_lshl_b32 s14, s14, 2","s_add_u32 s14, s14, s3"])
    for q in range(2):
        k.e([f"v_add_u32 v11, {8*q}, v5",
             "s_mul_i32 s18, s14, 18","v_add_u32 v12, s18, v11",
             "v_lshrrev_b32 v13, 2, v11","v_and_b32 v13, 1, v13","v_lshlrev_b32 v13, 2, v13",
             "v_and_b32 v14, 3, v11",f"v_add_u32 v14, {4*q}, v14",
             "v_lshrrev_b32 v15, 1, v14","v_add_u32 v13, v13, v15",
             "s_sub_u32 s18, s14, 32","s_lshl_b32 s18, s18, 3","v_add_u32 v13, s18, v13","v_mul_u32_u24 v13, 18, v13","v_and_b32 v14, 1, v14","v_add_u32 v13, v13, v14","v_add_u32 v13, 16, v13",
             "s_cmp_lt_u32 s14, 32","s_cselect_b64 vcc, -1, 0","v_cndmask_b32 v12, v13, v12, vcc",
             "s_movk_i32 s15, 1152",f"v_mul_lo_u32 v{40+q}, v12, s15",f"v_add_u32 v{40+q}, v{40+q}, v6"])
    for m in range(9):
        for q in range(2):
            k.e([f"s_movk_i32 s19, {m*128}", f"s_add_u32 m0, s30, {m*2048+q*1024}", "s_nop 0",
                 f"buffer_load_dwordx4 v{40+q}, s[36:39], s19 offen lds"])
    def dst_wo(m,f):
        nt=2*m+f
        k.e(["s_lshl_b32 s19, s14, 10",f"s_add_u32 s19, s19, {WS_WO+nt*AFB}"])
    process_units(k,dst_wo)
    k.e(f"s_branch {END}")
    k.label("k0_qkv")
    srd(k,36,(16,17),D*3*D*2)
    k.e(["s_sub_u32 s14, s2, 217","s_lshr_b32 s15, s14, 3","s_and_b32 s14, s14, 7",
         "s_mul_i32 s30, s3, 9216",
         "v_lshrrev_b32 v5, 2, v0","v_and_b32 v6, 3, v0",
         "s_lshl_b32 s18, s15, 2"])
    k.e(["s_add_u32 s19, s18, s14","s_mul_i32 s19, s19, 18","v_lshlrev_b32 v10, 3, v6","v_add_u32 v10, s19, v10","v_add_u32 v11, 560, v10","v_cmp_gt_u32 vcc, 2, v6","s_nop 1","v_cndmask_b32 v10, v11, v10, vcc",
         "s_sub_u32 s19, s14, 5","s_lshl_b32 s19, s19, 5","v_lshlrev_b32 v12, 3, v6","v_add_u32 v12, s19, v12","s_mul_i32 s22, s15, 72","s_add_u32 s22, s22, 1152","v_add_u32 v13, s22, v12",
         "v_mov_b32 v16, 0x20000000","v_cmp_gt_u32 vcc, 72, v12","s_nop 1","v_cndmask_b32 v13, v16, v13, vcc",
         "s_cmp_lt_u32 s14, 4","s_cselect_b64 vcc, -1, 0","v_cndmask_b32 v10, v13, v10, vcc","v_lshlrev_b32 v10, 1, v10",
         "v_mul_u32_u24 v11, 3456, v5","v_add_u32 v10, v10, v11",
         "v_and_b32 v12, 15, v0","v_lshrrev_b32 v13, 1, v12","v_and_b32 v13, 1, v13","v_mul_u32_u24 v13, 576, v13","v_and_b32 v14, 1, v12","v_lshrrev_b32 v15, 2, v12","v_lshlrev_b32 v15, 1, v15","v_add_u32 v14, v14, v15",
         "v_add_u32 v14, s18, v14","v_mul_u32_u24 v14, 18, v14","v_add_u32 v13, v13, v14","v_add_u32 v13, 16, v13","v_cmp_gt_u32 vcc, 8, v12","s_nop 1","v_cndmask_b32 v13, v16, v13, vcc","v_lshlrev_b32 v13, 1, v13",
         "v_lshrrev_b32 v14, 4, v0","v_mul_u32_u24 v14, 3456, v14","v_add_u32 v13, v13, v14",
         "s_mul_i32 s18, s3, %d"%(16*3456),"s_mov_b32 s23, 9","s_mov_b32 s26, s30","s_cmp_eq_u32 s14, 4","s_cbranch_scc1 k0_qkv4"])
    k.label("k0_qkvl")
    k.e(["s_mov_b32 m0, s26","s_add_u32 s26, s26, 1024","buffer_load_dwordx4 v10, s[36:39], s18 offen lds","s_add_u32 s18, s18, %d"%(64*3456),"s_sub_u32 s23, s23, 1","s_cmp_lg_u32 s23, 0","s_cbranch_scc1 k0_qkvl","s_branch k0_qkvp"])
    k.label("k0_qkv4")
    for q in range(4):
        k.e([f"s_add_u32 m0, s26, {q*256}",f"s_add_u32 s19, s18, {q*4*3456}","buffer_load_dword v13, s[36:39], s19 offen lds"])
    k.e(["s_add_u32 s26, s26, 1024","s_add_u32 s18, s18, %d"%(64*3456),"s_sub_u32 s23, s23, 1","s_cmp_lg_u32 s23, 0","s_cbranch_scc1 k0_qkv4"])
    k.label("k0_qkvp")
    k.e(["v_lshrrev_b32 v8, 2, v0","v_and_b32 v8, 3, v8","v_lshlrev_b32 v9, 2, v3","v_add_u32 v8, v8, v9","v_lshlrev_b32 v8, 6, v8",
         "v_lshrrev_b32 v9, 4, v0","v_and_b32 v9, 1, v9","v_lshlrev_b32 v9, 5, v9","v_add_u32 v8, v8, v9","v_and_b32 v9, 3, v0","v_lshlrev_b32 v9, 3, v9","v_add_u32 v8, v8, v9","v_add_u32 v7, s30, v8",
         "s_lshl_b32 s22, s15, 2","s_and_b32 s23, s14, 3","s_add_u32 s22, s22, s23",f"s_mul_i32 s22, s22, {WQKV_WAVE}",
         "s_lshr_b32 s23, s14, 2","s_xor_b32 s23, s23, 1","s_mul_i32 s23, s23, 36","s_add_u32 s23, s23, s3","s_lshl_b32 s23, s23, 10","s_add_u32 s22, s22, s23",f"s_add_u32 s22, s22, {WS_WQKV}",
         "s_mov_b32 s23, 9","s_waitcnt vmcnt(0)"])
    k.label("k0_qkvs")
    k.e(["ds_read_b64_tr_b16 v[16:17], v7","ds_read_b64_tr_b16 v[18:19], v7 offset:512","v_add_u32 v7, 1024, v7","s_waitcnt lgkmcnt(0)",
         "buffer_store_dwordx4 v[16:19], v1, s[8:11], s22 offen","s_add_u32 s22, s22, 4096","s_sub_u32 s23, s23, 1","s_cmp_lg_u32 s23, 0","s_nop 1","s_cbranch_scc1 k0_qkvs"])
    k.label(END)
    if Kern.STAMPS:
        k.stamp(6); k.e("s_waitcnt vmcnt(0)"); k.stamp(7); k.stamp_dump(int(os.environ.get("K0WG","0")))
    k.e("s_endpgm")
    return k, NWG0, 256, 81920
```

```python
from asmlib import *
from layout import *
from gemm import *
from k0 import fbits, ws_srd, layer_srd, layer_aliases
import os
LS="s[44:47]"
def xdma(k, i, nw, sbase_lds, sbase_g, srd=LS, tmp="s16"):
    return [f"s_add_u32 m0, {sbase_lds}, {i*nw*1024}", f"s_add_u32 {tmp}, {sbase_g}, {i*nw*1024}",
            ("vm",f"buffer_load_dwordx4 v1, {srd}, {tmp} offen lds",("X",i))]
def gen_k1():
    k=Kern("k1_qkv", nvgpr=256, nagpr=256, nsgpr=64); layer_aliases(k,"k1_qkv")
    END=k.name+"_end"
    k.e([f"s_cmp_ge_u32 s2, 256", f"s_cbranch_scc1 {END}",
         "s_load_dwordx2 s[4:5], s[0:1], 64"]); k.stamp(0)
    k.e(["v_lshrrev_b32 v1, 6, v0","v_and_b32 v0, 63, v0","s_nop 0","v_readfirstlane_b32 s3, v1",
         "v_lshlrev_b32 v1, 4, v0","v_and_b32 v2, 31, v0","v_lshrrev_b32 v3, 5, v0","v_add_u32 v4, 32768, v1",
         "s_lshr_b32 s16, s2, 3","s_and_b32 s13, s2, 1","s_lshl_b32 s13, s13, 2","s_and_b32 s17, s16, 3","s_add_u32 s13, s13, s17",
         "s_lshr_b32 s12, s2, 1","s_and_b32 s12, s12, 3","s_lshl_b32 s12, s12, 3","s_lshr_b32 s16, s16, 2","s_add_u32 s12, s12, s16",
         "s_and_b32 s15, s3, 1",f"s_mul_i32 s15, s15, {AFB}","s_lshr_b32 s14, s3, 1","s_lshl_b32 s14, s14, 10","s_add_u32 s15, s15, s14",
         f"s_mul_i32 s14, s12, {2*AFB}",f"s_add_u32 s14, s14, {L_XN2}","s_add_u32 s14, s14, s15",
         "s_lshl_b32 s20, s13, 2","s_add_u32 s20, s20, s3",f"s_mul_i32 s20, s20, {WQKV_WAVE}",f"s_add_u32 s20, s20, {WS_WQKV}",
         "s_waitcnt lgkmcnt(0)"])
    k.stamp(1)
    layer_srd(k); ws_srd(k,8,(4,5))
    RING=16; R=18; ACC0=96; ACC1=128; BT=160
    st=Stream(k,RING,R,72,btail=BT)
    k.e(["s_cmp_eq_u32 s3, 0","s_cselect_b32 s17, 16, 32","s_cmp_eq_u32 s3, 3","s_cselect_b32 s17, 8, s17","v_mov_b32 v11, 0x7f000000","v_cmp_gt_u32 vcc, s17, v2","s_nop 1","v_cndmask_b32 v11, v11, v1, vcc"])
    if 'nomask' not in os.environ.get('X1',''): st.voff_fn=lambda n: "v11" if n<36 else "v1"
    def xd(i): return [f"s_add_u32 m0, s15, {i*2048}", f"s_add_u32 s16, s14, {i*2048}", ("vm",f"buffer_load_dwordx4 v1, {LS}, s16 offen lds",("X",i))]
    for i in range(6):
        for it in xd(i): st.place(it)
    st.prefetch(9)
    for i in range(6,18):
        for it in xd(i): st.place(it)
    k.e(["s_lshl_b32 s21, s13, 2","s_add_u32 s22, s21, s3",
         "s_lshl_b32 s23, s12, 1",
         "s_lshl_b32 s24, s22, 16","s_lshl_b32 s25, s23, 10","s_add_u32 s24, s24, s25",f"s_add_u32 s24, s24, {CUR+L_Q1}",
         f"s_mul_i32 s25, s22, {KV_HEAD}",f"s_mul_i32 s26, s23, {KVREC}","s_add_u32 s25, s25, s26",f"s_add_u32 s25, s25, {CUR+L_KV}",
         f"s_mov_b32 s27, {fbits(QSCALE)}"])
    k.vm_wait(("X",5)); k.e("s_barrier"); k.stamp(2)
    bj=lambda u,kap: f"ds_read_b128 {st.breg(u,kap)}, v1 offset:{u*AFB+kap*1024}" if u*AFB+kap*1024<65536 else f"ds_read_b128 {st.breg(u,kap)}, v4 offset:{u*AFB+kap*1024-32768}"
    LA=3
    at={12-LA:[("vmwait",("X",11)),"s_barrier"],24-LA:[("vmwait",("X",17)),"s_barrier"]}
    PK=192
    def epi_qk():
        f=[]
        for u in range(2):
            a=ACC0+16*u; p=PK+8*u
            for i in range(8): f.append(f"v_mul_f32 v{a+i}, s27, v{a+i}")
            for j in range(4): f.append(f"v_cvt_pk_bf16_f32 v{p+j}, v{a+2*j}, v{a+2*j+1}")
            for j in range(4): f.append(f"v_cvt_pk_bf16_f32 v{p+4+j}, v{a+8+2*j}, v{a+8+2*j+1}")
        for u in range(2):
            p=PK+8*u
            f.append(("vm",f"buffer_store_dwordx4 v[{p}:{p+3}], v1, {LS}, s24 offen offset:{u*1024}",None))
            f.append(("vm",f"buffer_store_dwordx4 v[{p+4}:{p+7}], v1, {LS}, s25 offen offset:{u*KVREC}",None))
        return f
    LV=k.name+"_v"; FIN=k.name+"_fin"
    addr_left=["v_mov_b32 v5, 1.0","v_mov_b32 v6, s27","v_cmp_gt_u32 vcc, 32, v0","s_nop 1","v_cndmask_b32 v5, v5, v6, vcc",
         "s_lshl_b32 s28, s21, 13","s_lshl_b32 s29, s23, 7","s_add_u32 s28, s28, s29",f"s_add_u32 s28, s28, {CUR+L_Q2}",
         f"s_mul_i32 s29, s21, {KV_HEAD}",f"s_mul_i32 s30, s23, {KVREC}","s_add_u32 s29, s29, s30",f"s_add_u32 s29, s29, {CUR+L_KV+2304}",
         "v_mov_b32 v7, s29","v_mov_b32 v8, s28","v_cndmask_b32 v7, v7, v8, vcc","v_lshlrev_b32 v8, 2, v2","v_add_u32 v7, v7, v8",
         f"v_mov_b32 v8, {KV_HEAD}","v_mov_b32 v9, 8192","v_cndmask_b32 v8, v8, v9, vcc",
         f"v_mov_b32 v9, {KVREC}","v_mov_b32 v10, 128","v_cndmask_b32 v9, v9, v10, vcc"]
    epi_left=[]
    for u in range(2):
        a=ACC1+16*u
        epi_left+=[f"v_mul_f32 v{a+i}, v5, v{a+i}" for i in range(8)]+[f"v_cvt_pk_bf16_f32 v{208+4*u+j}, v{a+2*j}, v{a+2*j+1}" for j in range(4)]
        epi_left.append("v_mov_b32 v10, v7")
        for j in range(4):
            epi_left+=[("vm",f"buffer_store_dword v{208+4*u+j}, v10, {LS}, 0 offen",None),"v_add_u32 v10, v10, v8"]
        epi_left.append("v_add_u32 v7, v7, v9")
    addr_v=["s_sub_u32 s28, s3, 1","s_lshl_b32 s28, s28, 5","v_add_u32 v5, s28, v2",
         "v_mul_u32_u24 v6, 57, v5","v_lshrrev_b32 v6, 10, v6",
         "v_mul_u32_u24 v7, 18, v6","v_sub_u32 v7, v5, v7",
         "v_subrev_u32 v8, 72, v5","v_lshrrev_b32 v9, 2, v8","v_add_u32 v9, 18, v9","v_and_b32 v8, 3, v8",
         "v_cmp_gt_u32 vcc, 72, v5","s_nop 1","v_cndmask_b32 v6, v8, v6, vcc","v_cndmask_b32 v7, v9, v7, vcc",
         "v_cmp_ne_u32 s[32:33], 18, v7",
         f"s_mov_b32 s30, {KV_HEAD}","v_mul_lo_u32 v6, v6, s30","v_lshlrev_b32 v7, 4, v7","v_add_u32 v6, v6, v7",
         "v_mul_u32_u24 v7, 320, v3","v_add_u32 v6, v6, v7",
         "v_mov_b32 v8, 0x7f000000","v_cmp_gt_u32 vcc, 80, v5","s_nop 1","v_cndmask_b32 v6, v8, v6, vcc",
         f"s_mul_i32 s28, s21, {KV_HEAD}",f"s_mul_i32 s29, s23, {KVREC}","s_add_u32 s28, s28, s29",f"s_add_u32 s28, s28, {CUR+L_KV+1024}",
         "v_mov_b32 v9, 0x3f803f80"]
    epi_v=[]
    for u in range(2):
        a=ACC1+16*u; p=208+8*u
        epi_v+=[f"v_cvt_pk_bf16_f32 v{p+j}, v{a+2*j}, v{a+2*j+1}" for j in range(8)]
        epi_v+=[f"v_cndmask_b32 v{p+j}, v9, v{p+j}, s[32:33]" for j in range(8)]
    for u in range(2):
        p=208+8*u
        epi_v+=[("vm",f"buffer_store_dwordx4 v[{p}:{p+3}], v6, {LS}, s28 offen offset:{u*KVREC}",None),("vm",f"buffer_store_dwordx4 v[{p+4}:{p+7}], v6, {LS}, s28 offen offset:{u*KVREC+640}",None)]
    k.e(["s_cmp_lg_u32 s3, 0",f"s_cbranch_scc1 {LV}"])
    save=st.save()
    st.tile((ACC1,ACC1+16),list(range(36)),bjit=bj,la=LA,boost=1,hold=9,burst=8,at=at,fillers=addr_left,fill_start=40)
    k.stamp(3)
    st.tile((ACC0,ACC0+16),list(range(36)),fillers=epi_left,fill_start=5)
    k.e(f"s_branch {FIN}")
    k.label(LV)
    st.restore(save)
    st.tile((ACC1,ACC1+16),list(range(36)),bjit=bj,la=LA,boost=1,hold=9,burst=8,at=at,fillers=addr_v,fill_start=40,swap=True)
    k.stamp(3)
    st.tile((ACC0,ACC0+16),list(range(36)),fillers=epi_v,fill_start=5)
    k.label(FIN)
    k.stamp(4)
    k.e("s_nop 10")
    for it in epi_qk(): st.place(it)
    k.stamp(5); k.stamp_dump()
    k.label(END); k.e("s_endpgm")
    return k,256,256,73728
```

```python
from asmlib import *
from layout import *
from gemm import *
from k0 import fbits, ws_srd, cross_half_add, layer_srd, layer_aliases
LS="s[44:47]"
def gen_k3():
    k=Kern("k3_wo", nvgpr=256, nagpr=256, nsgpr=64); layer_aliases(k,"k3_wo")
    END=k.name+"_end"
    k.e([f"s_cmp_ge_u32 s2, 192", f"s_cbranch_scc1 {END}",
         "s_load_dwordx2 s[4:5], s[0:1], 64"]); k.stamp(0)
    k.e(["v_lshrrev_b32 v1, 6, v0","v_and_b32 v0, 63, v0","s_nop 0","v_readfirstlane_b32 s3, v1",
         "v_lshlrev_b32 v1, 4, v0","v_and_b32 v2, 31, v0","v_lshrrev_b32 v3, 5, v0","v_add_u32 v4, 32768, v1",
         "s_lshr_b32 s12, s2, 3","s_mul_i32 s13, s12, 43","s_lshr_b32 s13, s13, 8",
         "s_mul_i32 s14, s13, 6","s_sub_u32 s14, s12, s14",
         "s_lshl_b32 s13, s13, 3","s_and_b32 s12, s2, 7","s_add_u32 s12, s12, s13",
         "s_mul_i32 s13, s14, 3","s_add_u32 s13, s13, s3",
         f"s_mul_i32 s14, s12, {2*AFB}",f"s_add_u32 s15, s14, {CUR+L_O}",
         f"s_mul_i32 s20, s13, {AFB}",f"s_add_u32 s20, s20, {WS_WO}",
         "s_waitcnt lgkmcnt(0)"]); k.stamp(1)
    assert all((r*43>>8)==r//6 for r in range(24))
    layer_srd(k); ws_srd(k,8,(4,5))
    RING=16; R=18; ACC0=96; BT=160
    st=Stream(k,RING,R,36,btail=BT)
    def xd(i):
        return [f"s_add_u32 s17, s3, {3*i}","s_and_b32 s18, s17, 1",f"s_mul_i32 s18, s18, {AFB}","s_lshr_b32 s17, s17, 1","s_lshl_b32 s17, s17, 10","s_add_u32 m0, s17, s18","s_add_u32 s17, m0, s15",
                ("vm",f"buffer_load_dwordx4 v1, {LS}, s17 offen lds",("X",i))]
    for i in range(8):
        for it in xd(i): st.place(it)
    st.prefetch(9)
    for i in range(8,24):
        for it in xd(i): st.place(it)
    RES=200
    k.e(["v_lshrrev_b32 v16, 4, v2","v_mul_u32_u24 v16, 18432, v16","v_and_b32 v17, 15, v2","v_lshlrev_b32 v18, 4, v3","v_add_u32 v17, v17, v18","v_lshlrev_b32 v17, 4, v17","v_add_u32 v192, v16, v17"]) if False else None
    k.e(["s_lshl_b32 s21, s13, 10","s_add_u32 s21, s21, s14",f"s_add_u32 s22, s21, {L_X2}",f"s_add_u32 s23, s22, {AFB}",f"s_add_u32 s24, s21, {CUR+L_X1}",f"s_add_u32 s25, s24, {AFB}"])
    k.vm_wait(("X",7)); k.e("s_barrier"); k.stamp(2)
    bj=lambda u,kap: f"ds_read_b128 {st.breg(u,kap)}, v1 offset:{u*AFB+kap*1024}" if u*AFB+kap*1024<65536 else f"ds_read_b128 {st.breg(u,kap)}, v4 offset:{u*AFB+kap*1024-32768}"
    LA=3
    post={}
    res=["v_lshrrev_b32 v6, 4, v2","v_mul_u32_u24 v6, 18432, v6","v_and_b32 v7, 15, v2","v_lshlrev_b32 v8, 4, v3","v_add_u32 v7, v7, v8","v_lshlrev_b32 v7, 4, v7","v_add_u32 v216, v6, v7"]
    res+=[("vm",f"buffer_load_dwordx4 v[{RES+8*u+4*s}:{RES+8*u+4*s+3}], v216, {LS}, s{22+u} offen offset:{s*512}","R") for u in range(2) for s in range(2)]
    post[12]=res
    at={12-LA:[("vmwait",("X",15)),"s_barrier"],24-LA:[("vmwait",("X",23)),"s_barrier"]}
    fl=["s_lshl_b32 s26, s12, 1",f"s_mul_i32 s26, s26, {ST_TT}","s_lshr_b32 s27, s13, 1","s_lshl_b32 s27, s27, 9","s_add_u32 s26, s26, s27","s_and_b32 s27, s13, 1","s_lshl_b32 s27, s27, 3","s_add_u32 s26, s26, s27",f"s_add_u32 s26, s26, {CUR+L_ST}",
        "v_lshlrev_b32 v5, 4, v2"]
    st.tile((ACC0,ACC0+16),list(range(36)),bjit=bj,la=LA,post=post,at=at,boost=1,hold=9,burst=8,fillers=fl,fill_start=40)
    k.stamp(3)
    k.vm_wait("R")
    k.e("s_nop 8")
    PK=224
    for u in range(2):
        a=ACC0+16*u; r=RES+8*u; p=PK+8*u
        rmap=[0,2,8,10,4,6,12,14]
        for j in range(8):
            i=rmap[j]
            k.e([f"v_lshlrev_b32 v6, 16, v{r+j}", f"v_and_b32 v7, 0xffff0000, v{r+j}", f"v_add_f32 v{a+i}, v{a+i}, v6", f"v_add_f32 v{a+i+1}, v{a+i+1}, v7"])
        for j in range(8): k.e(f"v_cvt_pk_bf16_f32 v{p+j}, v{a+rmap[j]}, v{a+rmap[j]+1}")
        k.e(f"buffer_store_dwordx4 v[{p}:{p+3}], v216, {LS}, s{24+u} offen")
        k.e(f"buffer_store_dwordx4 v[{p+4}:{p+7}], v216, {LS}, s{24+u} offen offset:512")
    k.e([f"v_add_f32 v8, v{ACC0}, v{ACC0+1}",f"v_add_f32 v10, v{ACC0+16}, v{ACC0+17}",f"v_mul_f32 v9, v{ACC0}, v{ACC0}",f"v_mul_f32 v11, v{ACC0+16}, v{ACC0+16}"])
    for i in range(2,16): k.e([f"v_add_f32 v8, v8, v{ACC0+i}",f"v_add_f32 v10, v10, v{ACC0+16+i}"])
    for i in range(1,16): k.e([f"v_fmac_f32 v9, v{ACC0+i}, v{ACC0+i}",f"v_fmac_f32 v11, v{ACC0+16+i}, v{ACC0+16+i}"])
    k.e(["v_mov_b32 v12, v8","v_mov_b32 v13, v9","v_mov_b32 v14, v10","v_mov_b32 v15, v11","s_nop 0",
         "v_permlane32_swap_b32 v8, v12","v_permlane32_swap_b32 v9, v13","v_permlane32_swap_b32 v10, v14","v_permlane32_swap_b32 v11, v15","s_nop 0",
         "v_add_f32 v8, v8, v12","v_add_f32 v9, v9, v13","v_add_f32 v10, v10, v14","v_add_f32 v11, v11, v15",
         f"v_mul_f32 v12, {fbits(-1.0/32)}, v8",f"v_mul_f32 v14, {fbits(-1.0/32)}, v10","v_fmac_f32 v9, v12, v8","v_fmac_f32 v11, v14, v10",
         f"buffer_store_dwordx2 v[8:9], v5, {LS}, s26 offen",f"s_add_u32 s26, s26, {ST_TT}",f"buffer_store_dwordx2 v[10:11], v5, {LS}, s26 offen"])
    k.stamp(4); k.stamp_dump()
    k.label(END); k.e("s_endpgm")
    return k,192,192,73728
```

```python
from asmlib import *
from layout import *
from k0 import fbits, ws_srd, srd, layer_srd
LS="s[44:47]"
def gen_k6():
    k=Kern("k6_red", nvgpr=64, nsgpr=64)
    k.aliases=[(f"k6_red{l}_kernel",[f"s_mov_b32 s34, {hex(l*LSTRIDE)}"]) for l in range(2)]
    B=CUR; END=k.name+"_end"
    k.e([f"s_cmp_ge_u32 s2, 256", f"s_cbranch_scc1 {END}",
         "s_load_dwordx2 s[4:5], s[0:1], 64","s_load_dwordx2 s[6:7], s[0:1], 48"]); k.stamp(0)
    k.e(["v_lshrrev_b32 v1, 6, v0","v_and_b32 v2, 63, v0","s_nop 0","v_readfirstlane_b32 s3, v1",
         "v_and_b32 v3, 7, v2",
         "v_lshrrev_b32 v4, 3, v0",
         "v_lshrrev_b32 v5, 2, v4","v_and_b32 v6, 3, v4",
         "s_lshr_b32 s12, s2, 1","s_and_b32 s13, s2, 1",
         "v_lshlrev_b32 v7, 10, v5","v_lshlrev_b32 v8, 4, v6","s_lshl_b32 s14, s13, 3","v_add_u32 v8, s14, v8","v_add_u32 v8, v8, v3","v_lshlrev_b32 v8, 4, v8","v_add_u32 v7, v7, v8",
         "s_mul_i32 s15, s12, 18432",
         "s_waitcnt lgkmcnt(0)"]); k.stamp(1)
    layer_srd(k)
    k.e(f"s_add_u32 s16, s15, {B+L_X1}")
    k.e("buffer_load_dwordx4 v[12:15], v7, s[44:47], s16 offen")
    for s in range(8):
        k.e([f"s_add_u32 s16, s15, {B+L_PART+s*AF_SIZE}", f"buffer_load_dwordx4 v[{16+4*s}:{19+4*s}], v7, s[44:47], s16 offen"])
    A=48
    k.stamp(2)
    k.e("s_waitcnt vmcnt(8)"); k.stamp(3)
    for j in range(4): k.e([f"v_lshlrev_b32 v{A+2*j}, 16, v{12+j}", f"v_and_b32 v{A+2*j+1}, 0xffff0000, v{12+j}"])
    for s in range(8):
        k.e(f"s_waitcnt vmcnt({7-s})")
        for j in range(4):
            k.e([f"v_lshlrev_b32 v9, 16, v{16+4*s+j}", f"v_and_b32 v10, 0xffff0000, v{16+4*s+j}", f"v_add_f32 v{A+2*j}, v{A+2*j}, v9", f"v_add_f32 v{A+2*j+1}, v{A+2*j+1}, v10"])
    k.stamp(4)
    for j in range(4): k.e(f"v_cvt_pk_bf16_f32 v{56+j}, v{A+2*j}, v{A+2*j+1}")
    L0=k.name+"_l0"; FIN=k.name+"_fin"
    k.e(["s_cmp_eq_u32 s34, 0",f"s_cbranch_scc1 {L0}"])
    if True:
        srd(k,20,(6,7),S*D*2)
        k.e(["s_lshl_b32 s16, s12, 4","s_add_u32 s16, s16, s14","v_add_u32 v9, s16, v3","v_mul_u32_u24 v9, 1152, v9","v_lshlrev_b32 v10, 6, v5","v_add_u32 v9, v9, v10","v_lshlrev_b32 v10, 3, v6","v_add_u32 v9, v9, v10",
             "buffer_store_dwordx2 v[56:57], v9, s[20:23], 0 offen","buffer_store_dwordx2 v[58:59], v9, s[20:23], 0 offen offset:32",f"s_branch {FIN}"])
    k.label(L0)
    if True:
        k.e([f"s_add_u32 s16, s15, {B+L_X2}","buffer_store_dwordx4 v[56:59], v7, s[44:47], s16 offen"])
        for j in range(4): k.e([f"v_lshlrev_b32 v{A+2*j}, 16, v{56+j}", f"v_and_b32 v{A+2*j+1}, 0xffff0000, v{56+j}"])
        k.e([f"v_add_f32 v30, v{A}, v{A+1}",f"v_mul_f32 v31, v{A}, v{A}"])
        for i in range(2,8): k.e(f"v_add_f32 v30, v30, v{A+i}")
        for i in range(1,8): k.e(f"v_fmac_f32 v31, v{A+i}, v{A+i}")
        for v in (30,31):
            k.e(["s_nop 1",f"v_add_f32_dpp v{v}, v{v}, v{v} row_ror:8 row_mask:0xf bank_mask:0xf"])
        k.e(["v_mov_b32 v32, v30","v_mov_b32 v33, v31","s_nop 1","v_permlane16_swap_b32 v30, v32","v_permlane16_swap_b32 v31, v33","s_nop 1","v_add_f32 v30, v30, v32","v_add_f32 v31, v31, v33",
             "v_mov_b32 v32, v30","v_mov_b32 v33, v31","s_nop 1","v_permlane32_swap_b32 v30, v32","v_permlane32_swap_b32 v31, v33","s_nop 1","v_add_f32 v30, v30, v32","v_add_f32 v31, v31, v33",
             "s_lshl_b32 s17, s3, 6","v_lshlrev_b32 v11, 3, v3","v_add_u32 v9, s17, v11","ds_write_b64 v9, v[30:31]","s_waitcnt lgkmcnt(0)","s_barrier"])
        for w in range(9): k.e(f"ds_read_b64 v[{12+2*w}:{13+2*w}], v11 offset:{64*w}")
        k.e("s_waitcnt lgkmcnt(0)")
        k.e(["v_add_f32 v30, v12, v14","v_add_f32 v31, v13, v15"])
        for w in range(2,9): k.e([f"v_add_f32 v30, v30, v{12+2*w}",f"v_add_f32 v31, v31, v{13+2*w}"])
        k.e([f"v_mul_f32 v30, {fbits(1.0/576)}, v30",f"v_mul_f32 v31, {fbits(1.0/576)}, v31","v_fma_f32 v31, -v30, v30, v31","v_max_f32 v31, 0, v31",f"v_add_f32 v32, {fbits(1e-5)}, v31","v_rsq_f32 v32, v32"])
        for i in range(8): k.e(f"v_sub_f32 v{A+i}, v{A+i}, v30")
        for i in range(8): k.e(f"v_mul_f32 v{A+i}, v{A+i}, v32")
        for j in range(4): k.e(f"v_cvt_pk_bf16_f32 v{60+j}, v{A+2*j}, v{A+2*j+1}")
        k.e(["s_lshr_b32 s16, s12, 1",f"s_mul_i32 s16, s16, {AFB}",f"s_add_u32 s16, s16, {B+L_XN2}","s_and_b32 s17, s12, 1","s_lshl_b32 s17, s17, 4","s_add_u32 s17, s17, s14",
             "v_add_u32 v9, s17, v3","v_and_b32 v10, 1, v6","v_lshlrev_b32 v10, 5, v10","v_add_u32 v9, v9, v10","v_lshlrev_b32 v9, 4, v9","v_lshrrev_b32 v10, 1, v6","v_lshlrev_b32 v10, 3, v10","v_add_u32 v9, v9, v10",
             "v_lshlrev_b32 v10, 11, v5","v_add_u32 v9, v9, v10",
             "buffer_store_dwordx2 v[60:61], v9, s[44:47], s16 offen","buffer_store_dwordx2 v[62:63], v9, s[44:47], s16 offen offset:1024"])
    k.label(FIN)
    import os
    if os.environ.get("OFFT"):
        k.e(["s_cmp_lg_u32 s2, 0","s_cbranch_scc1 k6_nt","s_cmp_eq_u32 s34, 0","s_cbranch_scc1 k6_nt","s_load_dwordx2 s[60:61], s[0:1], 56","s_memrealtime s[62:63]","s_waitcnt lgkmcnt(0)","v_mov_b32 v60, 0","v_mov_b32 v61, s62","global_store_dword v60, v61, s[60:61] offset:44","k6_nt:"])
    k.stamp(5); k.stamp_dump()
    k.label(END); k.e("s_endpgm")
    return k,256,576,1024
```

```python
import re

class Kern:
    def __init__(self, name, nvgpr=256, nagpr=0, nsgpr=100):
        self.name=name; self.l=[]; self.vm=[]; self.lg=[]
        self.nvgpr=nvgpr; self.nagpr=nagpr; self.nsgpr=nsgpr
        self.tail=[]
        self._lab=0
    def e(self, s):
        if isinstance(s,(list,tuple)):
            for x in s: self.e(x)
        else:
            self.l.append(s)
    def c(self, s): self.l.append("; "+s)
    def label(self, s): self.l.append(s+":")
    def newlabel(self, base):
        self._lab+=1; return f"{self.name}_{base}_{self._lab}"
    STAMPS=False
    def stamp(self,i):
        import os
        ok=os.environ.get("OFFK")
        if ok and ok.split(":")[0] in self.name:
            sel=[int(x) for x in ok.split(":")[2].split(",")]
            if i==0 or i in sel:
                self.nsgpr=100; self.e(f"s_memtime s[{64+2*i}:{65+2*i}]")
            return
        if Kern.STAMPS:
            if i==0: self.e("s_memrealtime s[90:91]")
            self.e(f"s_memtime s[{64+2*i}:{65+2*i}]"); self.nstamp=max(getattr(self,'nstamp',0),i+1)
    def stamp_dump(self, wg=0):
        import os
        ok=os.environ.get("OFFK")
        if ok and ok.split(":")[0] in self.name:
            lay=int(ok.split(":")[1]); sel=[int(x) for x in ok.split(":")[2].split(",")]
            li=self.launch_idx[lay] if getattr(self,"launch_idx",None) else 0
            L=self.newlabel("nodump")
            self.e(["s_waitcnt lgkmcnt(0)","s_cmp_lg_u32 s2, 0",f"s_cbranch_scc1 {L}","s_cmp_lg_u32 s3, 0",f"s_cbranch_scc1 {L}",f"s_cmp_lg_u32 s34, {lay*0x3000000}",f"s_cbranch_scc1 {L}",
                    "s_load_dwordx2 s[6:7], s[0:1], 56","s_waitcnt lgkmcnt(0)",f"s_add_u32 s6, s6, LAUNCHOFF_{self.name}_{lay}","s_addc_u32 s7, s7, 0","v_mov_b32 v2, 0"])
            for j,i in enumerate(sel):
                self.e([f"s_sub_u32 s60, s{64+2*i}, s64","v_mov_b32 v3, s60",f"global_store_dword v2, v3, s[6:7] offset:{48+4*j}"])
            self.label(L); return
        if not Kern.STAMPS: return
        self.nsgpr=100
        L=self.newlabel("nodump")
        self.e(["s_memrealtime s[92:93]","s_load_dwordx2 s[6:7], s[0:1], 56","s_waitcnt lgkmcnt(0)",
                "s_and_b32 s60, s2, 7","s_or_b32 s60, s60, s3","s_cmp_lg_u32 s60, 0",f"s_cbranch_scc1 {L}x","s_mov_b64 exec, 1",
                "v_mov_b32 v2, 0","s_not_b32 s60, s90","v_mov_b32 v3, s60","global_atomic_umax v2, v3, s[6:7] offset:496","v_mov_b32 v3, s92","global_atomic_umax v2, v3, s[6:7] offset:500","s_mov_b64 exec, -1",f"{L}x:",
                f"s_cmp_lg_u32 s2, {wg}",f"s_cbranch_scc1 {L}","s_mul_i32 s60, s3, 48","v_mov_b32 v2, s60"])
        for i in range(self.nstamp):
            self.e([f"s_sub_u32 s60, s{64+2*i}, s64",f"v_mov_b32 v3, s60",f"global_store_dword v2, v3, s[6:7] offset:{4*i}"])
        self.e(["s_sub_u32 s60, s92, s90","v_mov_b32 v3, s60","global_store_dword v2, v3, s[6:7] offset:44"])
        self.label(L)
    def vm_op(self, s, tag=None):
        self.e(s); self.vm.append(tag)
    def vm_need(self, tag):
        idx=[i for i,t in enumerate(self.vm) if t==tag]
        if not idx: return None
        return len(self.vm)-1-idx[-1]
    def vm_wait(self, tag):
        n=self.vm_need(tag)
        if n is None: return False
        assert n<=63, ("vmcnt too large", n, tag)
        self.e(f"s_waitcnt vmcnt({n})")
        self.vm=self.vm[len(self.vm)-n:] if n>0 else []
        return True
    def vm_wait_all(self):
        self.e("s_waitcnt vmcnt(0)"); self.vm=[]
    def lg_op(self, s, tag=None):
        self.e(s); self.lg.append(tag)
    def lg_need(self, tag):
        idx=[i for i,t in enumerate(self.lg) if t==tag]
        if not idx: return None
        return len(self.lg)-1-idx[-1]
    def lg_wait(self, tag):
        n=self.lg_need(tag)
        if n is None: return False
        if n>15: n=15
        self.e(f"s_waitcnt lgkmcnt({n})")
        self.lg=self.lg[len(self.lg)-n:] if n>0 else []
        return True
    def lg_wait_all(self):
        self.e("s_waitcnt lgkmcnt(0)"); self.lg=[]
    aliases=None
    def entries(self): return [a[0] for a in self.aliases] if self.aliases else [self.name]
    def code_prefetch(self, start, end, nw, vtmp, stmp=(50,51,52), wave="s3", tag=None):
        L=self.newlabel("pc"); a,b,c=stmp
        self.e([f"s_getpc_b64 s[{a}:{a+1}]"]); self.label(L)
        self.e([f"s_add_u32 s{a}, s{a}, {start}-{L}", f"s_addc_u32 s{a+1}, s{a+1}, ({start}-{L})>>32",
                f"s_lshr_b32 s{c}, s2, 3", f"s_and_b32 s{c}, s{c}, 31", f"s_mul_i32 s{c}, s{c}, {nw}", f"s_add_u32 s{c}, s{c}, {wave}", f"s_lshl_b32 s{c}, s{c}, 10",
                f"s_min_u32 s{c}, s{c}, {end}-{start}-1024",
                f"v_lshlrev_b32 v{vtmp}, 4, v0", f"v_add_u32 v{vtmp}, s{c}, v{vtmp}"])
        self.vm_op(f"global_load_dwordx4 v[{vtmp+2}:{vtmp+5}], v{vtmp}, s[{a}:{a+1}]", tag)
    def offt_start(self, idx_expr_lines, slot_sgpr):
        pass
    def text(self):
        import os
        sm=os.environ.get("STMOD","")
        which=os.environ.get("STK","")
        if sm and (not which or any(w in self.name for w in which.split(","))):
            self.l=[(x+" "+sm if x.startswith("buffer_store") and " sc1" not in x and " nt" not in x else x) for x in self.l]
        o=[]
        if self.aliases:
            for ai,(nm,setup) in enumerate(self.aliases):
                extra=[]
                if os.environ.get("OFFT"):
                    li=self.launch_idx[ai]
                    extra=["s_cmp_lg_u32 s2, 0",f"s_cbranch_scc1 {nm}_nt","s_load_dwordx2 s[60:61], s[0:1], 56","s_memrealtime s[62:63]","s_waitcnt lgkmcnt(0)",
                           f"s_add_u32 s60, s60, {(10-li)*512}","s_addc_u32 s61, s61, 0","v_mov_b32 v250, 0" if self.nvgpr>250 else "v_mov_b32 v60, 0",
                           ("v_mov_b32 v251, s62" if self.nvgpr>250 else "v_mov_b32 v61, s62"),
                           (f"global_store_dword v250, v251, s[60:61] offset:{4*li}" if self.nvgpr>250 else f"global_store_dword v60, v61, s[60:61] offset:{4*li}"),f"{nm}_nt:"]
                o+=[f".globl {nm}",".p2align 8",f".type {nm},@function",f"{nm}:"]+["  "+x if not x.endswith(":") else x for x in extra+setup]+[f"  s_branch {self.name}_body"]
            o+=[".p2align 6",f"{self.name}_body:"]
        else:
            o=[f".globl {self.name}",".p2align 8",f".type {self.name},@function",f"{self.name}:"]
        for x in self.l:
            if x.endswith(":") or x.startswith(";") or x.startswith("."): o.append(x)
            else: o.append("  "+x)
        o+=self.tail
        o.append(f"{self.name}_codeend:")
        return "\n".join(o)
    def desc(self):
        tot=self.nvgpr+self.nagpr
        acc=(self.nvgpr+3)//4*4
        if self.nagpr: tot=acc+self.nagpr
        out=[]
        for nm in self.entries():
            out+=[".p2align 6",f".amdhsa_kernel {nm}",
            f"  .amdhsa_next_free_vgpr {tot}",f"  .amdhsa_next_free_sgpr {self.nsgpr}",f"  .amdhsa_accum_offset {acc}",
            "  .amdhsa_group_segment_fixed_size 0","  .amdhsa_kernarg_size 72","  .amdhsa_user_sgpr_count 2",
            "  .amdhsa_user_sgpr_kernarg_segment_ptr 1","  .amdhsa_system_sgpr_workgroup_id_x 1",
            "  .amdhsa_float_denorm_mode_32 3",".end_amdhsa_kernel"]
        return "\n".join(out)

_reg_re=re.compile(r'^(-?)(\|?)(abs\()?([vas])(\d+|\[(\d+):(\d+)\])')
def regs_of(op):
    op=op.strip()
    if op in("vcc","exec","m0","scc"): return [("s",op)]
    if op in ("vcc_lo","vcc_hi"): return [("s","vcc")]
    m=_reg_re.match(op)
    if not m: return []
    k=m.group(4)
    if m.group(6) is not None:
        return [(k,i) for i in range(int(m.group(6)),int(m.group(7))+1)]
    return [(k,int(m.group(5)))]
TRANS=("v_exp_","v_log_","v_rcp_","v_rsq_","v_sqrt_","v_sin_","v_cos_")
def split_ops(rest):
    ops=[];d=0;cur=""
    for ch in rest:
        if ch=="[":d+=1
        if ch=="]":d-=1
        if ch=="," and d==0: ops.append(cur.strip());cur=""
        else: cur+=ch
    if cur.strip(): ops.append(cur.strip())
    out=[]
    for o in ops:
        out.append(o.split()[0] if o.split() else o)
    return out
def parse(line):
    line=line.split(";")[0].strip()
    if not line or line.endswith(":") or line.startswith("."): return None
    p=line.split(None,1); mn=p[0]; ops=split_ops(p[1]) if len(p)>1 else []
    d=dict(mn=mn,w=[],r=[],kind="other",line=line,states=1)
    R=lambda i: regs_of(ops[i]) if i<len(ops) else []
    if mn=="s_nop": d["states"]=int(ops[0],0)+1; d["kind"]="nop"; return d
    if mn.startswith("v_mfma"):
        d["kind"]="mfma"; d["w"]=R(0); d["A"]=R(1); d["B"]=R(2); d["C"]=R(3); d["r"]=d["A"]+d["B"]+d["C"]
        d["passes"]= 16 if ("_2b_" in mn or "32x32x2_f32" in mn) else (8 if "32x32" in mn else 4)
        return d
    if mn.startswith("v_"):
        d["kind"]="trans" if mn.startswith(TRANS) else "valu"
        if mn.startswith("v_cmp"):
            d["w"]=R(0); d["r"]=sum((R(i) for i in range(1,len(ops))),[])
            if mn.startswith("v_cmpx"): d["w"]=d["w"]+[("s","exec")]
        elif mn.startswith("v_readfirstlane") or mn.startswith("v_readlane"):
            d["w"]=R(0); d["r"]=sum((R(i) for i in range(1,len(ops))),[]); d["lane"]=True
        elif mn.startswith("v_permlane"):
            d["w"]=R(0)+R(1); d["r"]=R(0)+R(1); d["perm"]=True
        else:
            d["w"]=R(0); d["r"]=sum((R(i) for i in range(1,len(ops))),[])
            if mn.startswith(("v_fmac","v_dot2c","v_mac","v_pk_fmac")): d["r"]+=R(0)
            if "_co_" in mn and len(ops)>1 and ops[1] in("vcc",) : d["w"]+= [("s","vcc")]
            if mn.startswith("v_cndmask") and len(ops)==3: d["r"]+=[("s","vcc")]
            if "dpp" in mn or "row_" in line or "quad_perm" in line: d["dpp"]=True
            if "sdwa" in mn and "UNUSED_PRESERVE" in line: d["r"]+=R(0)
        return d
    if mn.startswith(("buffer_","global_")):
        d["kind"]="vmem"
        lds=" lds" in (" "+line) and mn.startswith("buffer_load") or "load_lds" in mn
        if mn.startswith("buffer_load") and not lds:
            d["w"]=R(0); d["r"]=sum((R(i) for i in range(1,len(ops))),[])
        elif mn.startswith("global_load") and not lds:
            d["w"]=R(0); d["r"]=sum((R(i) for i in range(1,len(ops))),[])
        else:
            d["r"]=sum((R(i) for i in range(0,len(ops))),[])
            if lds: d["r"]+=[("s","m0")]; d["dma"]=True
            if mn.startswith("buffer_store"): d["sdata"]=R(0); d["wide"]=("x4" in mn or "x3" in mn)
            if mn.startswith("buffer_atomic"): d["sdata"]=R(0)
            if mn.startswith("global_store"): d["sdata"]=R(1); d["wide"]=("x4" in mn or "x3" in mn)
        return d
    if mn.startswith("ds_"):
        d["kind"]="ds"
        if mn.startswith(("ds_read","ds_bpermute","ds_permute","ds_swizzle")):
            d["w"]=R(0); d["r"]=sum((R(i) for i in range(1,len(ops))),[])
        else:
            d["r"]=sum((R(i) for i in range(0,len(ops))),[])
        return d
    if mn.startswith("s_"):
        d["kind"]="salu"
        if mn.startswith(("s_cmp","s_cbranch","s_branch","s_waitcnt","s_barrier","s_endpgm","s_setprio","s_bitcmp")):
            d["r"]=sum((R(i) for i in range(0,len(ops))),[])
        else:
            d["w"]=R(0); d["r"]=sum((R(i) for i in range(1,len(ops))),[])
            if "saveexec" in mn: d["w"]+=[("s","exec")]
        return d
    return d
def check_hazards(lines, name=""):
    ins=[p for p in (parse(l) for l in lines) if p]
    probs=[]
    for x in ins:
        m=re.search(r'offset:(\d+)',x["line"])
        if m:
            o=int(m.group(1))
            if x["mn"].startswith("buffer_") and o>4095: probs.append(f"{name}: MUBUF offset too large: {x['line']}")
            if x["mn"].startswith("global_") and o>4095: probs.append(f"{name}: global offset too large: {x['line']}")
            if x["mn"].startswith("ds_") and o>65535: probs.append(f"{name}: DS offset too large: {x['line']}")
    pos=[];t=0
    for x in ins: pos.append(t); t+=x["states"]
    lastw={}
    lastCread={}
    laststore={}
    def dist(i,j):
        return pos[j]-pos[i]-ins[i]["states"]
    for j,x in enumerate(ins):
        k=x["kind"]
        isvalu=k in("valu","trans")
        for r in x["r"]:
            if r not in lastw: continue
            i=lastw[r]; p=ins[i]; d=dist(i,j); need=0
            pk=p["kind"]
            if pk in("valu","trans"):
                if k=="mfma" and r[0] in "va": need=2
                if pk=="trans" and k in("valu",) and r[0]=="v": need=max(need,1)
                if pk=="trans" and k=="mfma": need=2
                if x.get("lane") and r[0]=="v": need=max(need,1)
                if x.get("perm") and r[0]=="v": need=max(need,2)
                if x.get("dpp") and r[0]=="v": need=max(need,2)
                if r[0]=="s" and r[1]!="exec":
                    if isvalu: need=max(need,2)
                    if k=="vmem": need=max(need,5)
                    if x.get("lane"): need=max(need,4)
                if r==("s","exec") and x.get("dpp"): need=max(need,5)
            if p["mn"].startswith("v_dot") and x["mn"]!=p["mn"] and r[0]=="v": need=max(need,3)
            if pk=="mfma":
                P=p["passes"]; big={4:8,8:12,16:20,2:5}[P]
                if k=="mfma":
                    if r in x["C"] and r not in x["A"] and r not in x["B"]:
                        same=(x["C"]==p["w"] and x["passes"]==P)
                        need=0 if same else {4:6,8:10,16:18}[P]
                    else: need=big
                elif k in("valu","trans","vmem","ds"): need=big
            if pk=="salu" and r==("s","m0") and x.get("dma"): need=1
            if d<need: probs.append(f"{name}: RAW {r} need {need} have {d}: [{p['line']}] -> [{x['line']}]")
        for r in x["w"]:
            if r in lastw:
                i=lastw[r]; p=ins[i]; d=dist(i,j)
                if p["kind"]=="mfma":
                    P=p["passes"]; big={4:8,8:12,16:20}[P]
                    if k in("valu","trans","vmem","ds") and d<big:
                        probs.append(f"{name}: WAW {r} need {big} have {d}: [{p['line']}] -> [{x['line']}]")
                    if k=="mfma" and not (r in x["C"]) and d<{4:6,8:10,16:18}[P]:
                        probs.append(f"{name}: WAW(mfma) {r} have {d}: [{p['line']}] -> [{x['line']}]")
            if r in lastCread and isvalu:
                i=lastCread[r]; P=ins[i]["passes"]; need={4:3,8:7,16:15}[P]; d=dist(i,j)
                if d<need: probs.append(f"{name}: WAR-C {r} need {need} have {d}: [{ins[i]['line']}] -> [{x['line']}]")
            if r in laststore and isvalu:
                i=laststore[r]; d=dist(i,j)
                if d<2: probs.append(f"{name}: store-data WAR {r} have {d}: [{ins[i]['line']}] -> [{x['line']}]")
        if k=="mfma":
            for r in x["C"]: lastCread[r]=j
        if x.get("wide"):
            for r in x["sdata"]: laststore[r]=j
        for r in x["w"]: lastw[r]=j
    return probs

def build_file(kerns, launches, header_comment):
    o=[]
    o+=header_comment
    for (k,grid,block,lds) in launches:
        o.append(f"; @launch kernel={k} grid=({grid},1,1) block=({block},1,1) lds={lds}")
    o.append('.amdgcn_target "amdgcn-amd-amdhsa--gfx950"')
    o.append(".text")
    for k in kerns: o.append(k.text())
    o.append('.section .rodata,"a"')
    for k in kerns: o.append(k.desc())
    return "\n".join(o)+"\n"
```

```python
from asmlib import *
from layout import *
from gemm import *
from k0 import fbits, ws_srd, layer_srd, layer_aliases
import os
LS="s[44:47]"
def xdma(k, i, nw, sbase_lds, sbase_g, srd=LS, tmp="s16"):
    return [f"s_add_u32 m0, {sbase_lds}, {i*nw*1024}", f"s_add_u32 {tmp}, {sbase_g}, {i*nw*1024}",
            ("vm",f"buffer_load_dwordx4 v1, {srd}, {tmp} offen lds",("X",i))]
X1=os.environ.get('X1','qlv')
MQ=' sc1' if 'q' in X1 else ''; ML=' sc1' if 'l' in X1 else ''; MV=' sc1' if 'v' in X1 else ''
def gen_k1():
    k=Kern("k1_qkv", nvgpr=256, nagpr=256, nsgpr=64); layer_aliases(k,"k1_qkv")
    END=k.name+"_end"
    k.e([f"s_cmp_ge_u32 s2, 256", f"s_cbranch_scc1 {END}",
         "s_load_dwordx2 s[4:5], s[0:1], 64"]); k.stamp(0)
    k.e(["v_lshrrev_b32 v1, 6, v0","v_and_b32 v0, 63, v0","s_nop 0","v_readfirstlane_b32 s3, v1",
         "v_lshlrev_b32 v1, 4, v0","v_and_b32 v2, 31, v0","v_lshrrev_b32 v3, 5, v0","v_add_u32 v4, 32768, v1",
         "s_lshr_b32 s16, s2, 3","s_and_b32 s13, s2, 1","s_lshl_b32 s13, s13, 2","s_and_b32 s17, s16, 3","s_add_u32 s13, s13, s17",
         "s_lshr_b32 s12, s2, 1","s_and_b32 s12, s12, 3","s_lshl_b32 s12, s12, 3","s_lshr_b32 s16, s16, 2","s_add_u32 s12, s12, s16",
         "s_and_b32 s15, s3, 1",f"s_mul_i32 s15, s15, {AFB}","s_lshr_b32 s14, s3, 1","s_lshl_b32 s14, s14, 10","s_add_u32 s15, s15, s14",
         f"s_mul_i32 s14, s12, {2*AFB}",f"s_add_u32 s14, s14, {L_XN2}","s_add_u32 s14, s14, s15",
         "s_lshl_b32 s20, s13, 2","s_add_u32 s20, s20, s3",f"s_mul_i32 s20, s20, {WQKV_WAVE}",f"s_add_u32 s20, s20, {WS_WQKV}",
         "s_waitcnt lgkmcnt(0)"])
    k.stamp(1)
    layer_srd(k); ws_srd(k,8,(4,5))
    RING=16; R=18; ACC0=96; ACC1=128; BT=160
    st=Stream(k,RING,R,72,btail=BT)
    k.e(["s_cmp_eq_u32 s3, 0","s_cselect_b32 s17, 16, 32","s_cmp_eq_u32 s3, 3","s_cselect_b32 s17, 8, s17","v_mov_b32 v11, 0x7f000000","v_cmp_gt_u32 vcc, s17, v2","s_nop 1","v_cndmask_b32 v11, v11, v1, vcc"])
    if True: st.voff_fn=lambda n: "v11" if n<36 else "v1"
    def xd(i): return [f"s_add_u32 m0, s15, {i*2048}", f"s_add_u32 s16, s14, {i*2048}", ("vm",f"buffer_load_dwordx4 v1, {LS}, s16 offen lds",("X",i))]
    for i in range(6):
        for it in xd(i): st.place(it)
    st.prefetch(9)
    for i in range(6,18):
        for it in xd(i): st.place(it)
    k.e(["s_lshl_b32 s21, s13, 2","s_add_u32 s22, s21, s3",
         "s_lshl_b32 s23, s12, 1",
         "s_lshl_b32 s24, s22, 16","s_lshl_b32 s25, s23, 10","s_add_u32 s24, s24, s25",f"s_add_u32 s24, s24, {CUR+L_Q1}",
         f"s_mul_i32 s25, s22, {KV_HEAD}",f"s_mul_i32 s26, s23, {KVREC}","s_add_u32 s25, s25, s26",f"s_add_u32 s25, s25, {CUR+L_KV}",
         f"s_mov_b32 s27, {fbits(QSCALE)}"])
    k.vm_wait(("X",5)); k.e("s_barrier"); k.stamp(2)
    bj=lambda u,kap: f"ds_read_b128 {st.breg(u,kap)}, v1 offset:{u*AFB+kap*1024}" if u*AFB+kap*1024<65536 else f"ds_read_b128 {st.breg(u,kap)}, v4 offset:{u*AFB+kap*1024-32768}"
    LA=3
    at={12-LA:[("vmwait",("X",11)),"s_barrier"],24-LA:[("vmwait",("X",17)),"s_barrier"]}
    PK=192
    def epi_qk():
        f=[]
        for u in range(2):
            a=ACC0+16*u; p=PK+8*u
            for i in range(8): f.append(f"v_mul_f32 v{a+i}, s27, v{a+i}")
            for j in range(4): f.append(f"v_cvt_pk_bf16_f32 v{p+j}, v{a+2*j}, v{a+2*j+1}")
            for j in range(4): f.append(f"v_cvt_pk_bf16_f32 v{p+4+j}, v{a+8+2*j}, v{a+8+2*j+1}")
        for u in range(2):
            p=PK+8*u
            f.append(("vm",f"buffer_store_dwordx4 v[{p}:{p+3}], v1, {LS}, s24 offen offset:{u*1024}{MQ}",None))
            f.append(("vm",f"buffer_store_dwordx4 v[{p+4}:{p+7}], v1, {LS}, s25 offen offset:{u*KVREC}{MQ}",None))
        return f
    LV=k.name+"_v"; FIN=k.name+"_fin"
    addr_left=["v_mov_b32 v5, 1.0","v_mov_b32 v6, s27","v_cmp_gt_u32 vcc, 32, v0","s_nop 1","v_cndmask_b32 v5, v5, v6, vcc",
         "s_lshl_b32 s28, s21, 13","s_lshl_b32 s29, s23, 7","s_add_u32 s28, s28, s29",f"s_add_u32 s28, s28, {CUR+L_Q2}",
         f"s_mul_i32 s29, s21, {KV_HEAD}",f"s_mul_i32 s30, s23, {KVREC}","s_add_u32 s29, s29, s30",f"s_add_u32 s29, s29, {CUR+L_KV+2304}",
         "v_mov_b32 v7, s29","v_mov_b32 v8, s28","v_cndmask_b32 v7, v7, v8, vcc","v_lshlrev_b32 v8, 2, v2","v_add_u32 v7, v7, v8",
         f"v_mov_b32 v8, {KV_HEAD}","v_mov_b32 v9, 8192","v_cndmask_b32 v8, v8, v9, vcc",
         f"v_mov_b32 v9, {KVREC}","v_mov_b32 v10, 128","v_cndmask_b32 v9, v9, v10, vcc"]
    epi_left=[]
    for u in range(2):
        a=ACC1+16*u
        epi_left+=[f"v_mul_f32 v{a+i}, v5, v{a+i}" for i in range(8)]+[f"v_cvt_pk_bf16_f32 v{208+4*u+j}, v{a+2*j}, v{a+2*j+1}" for j in range(4)]
        epi_left.append("v_mov_b32 v10, v7")
        for j in range(4):
            epi_left+=[("vm",f"buffer_store_dword v{208+4*u+j}, v10, {LS}, 0 offen{ML}",None),"v_add_u32 v10, v10, v8"]
        epi_left.append("v_add_u32 v7, v7, v9")
    addr_v=["s_sub_u32 s28, s3, 1","s_lshl_b32 s28, s28, 5","v_add_u32 v5, s28, v2",
         "v_mul_u32_u24 v6, 57, v5","v_lshrrev_b32 v6, 10, v6",
         "v_mul_u32_u24 v7, 18, v6","v_sub_u32 v7, v5, v7",
         "v_subrev_u32 v8, 72, v5","v_lshrrev_b32 v9, 2, v8","v_add_u32 v9, 18, v9","v_and_b32 v8, 3, v8",
         "v_cmp_gt_u32 vcc, 72, v5","s_nop 1","v_cndmask_b32 v6, v8, v6, vcc","v_cndmask_b32 v7, v9, v7, vcc",
         "v_cmp_ne_u32 s[32:33], 18, v7",
         f"s_mov_b32 s30, {KV_HEAD}","v_mul_lo_u32 v6, v6, s30","v_lshlrev_b32 v7, 4, v7","v_add_u32 v6, v6, v7",
         "v_mul_u32_u24 v7, 320, v3","v_add_u32 v6, v6, v7",
         "v_mov_b32 v8, 0x7f000000","v_cmp_gt_u32 vcc, 80, v5","s_nop 1","v_cndmask_b32 v6, v8, v6, vcc",
         f"s_mul_i32 s28, s21, {KV_HEAD}",f"s_mul_i32 s29, s23, {KVREC}","s_add_u32 s28, s28, s29",f"s_add_u32 s28, s28, {CUR+L_KV+1024}",
         "v_mov_b32 v9, 0x3f803f80"]
    epi_v=[]
    for u in range(2):
        a=ACC1+16*u; p=208+8*u
        epi_v+=[f"v_cvt_pk_bf16_f32 v{p+j}, v{a+2*j}, v{a+2*j+1}" for j in range(8)]
        epi_v+=[f"v_cndmask_b32 v{p+j}, v9, v{p+j}, s[32:33]" for j in range(8)]
    for u in range(2):
        p=208+8*u
        epi_v+=[("vm",f"buffer_store_dwordx4 v[{p}:{p+3}], v6, {LS}, s28 offen offset:{u*KVREC}{MV}",None),("vm",f"buffer_store_dwordx4 v[{p+4}:{p+7}], v6, {LS}, s28 offen offset:{u*KVREC+640}{MV}",None)]
    k.e(["s_cmp_lg_u32 s3, 0",f"s_cbranch_scc1 {LV}"])
    save=st.save()
    st.tile((ACC1,ACC1+16),list(range(36)),bjit=bj,la=LA,boost=1,hold=9,burst=8,at=at,fillers=addr_left,fill_start=40)
    k.stamp(3)
    st.tile((ACC0,ACC0+16),list(range(36)),fillers=epi_left,fill_start=5)
    k.e(f"s_branch {FIN}")
    k.label(LV)
    st.restore(save)
    st.tile((ACC1,ACC1+16),list(range(36)),bjit=bj,la=LA,boost=1,hold=9,burst=8,at=at,fillers=addr_v,fill_start=40,swap=True)
    k.stamp(3)
    st.tile((ACC0,ACC0+16),list(range(36)),fillers=epi_v,fill_start=5)
    k.label(FIN)
    k.stamp(4)
    k.e("s_nop 10")
    for it in epi_qk(): st.place(it)
    k.stamp(5); k.stamp_dump()
    k.label(END); k.e("s_endpgm")
    return k,256,256,73728
```

```python
from asmlib import *
from layout import *
import struct
def fbits(x): return "0x%08x"%struct.unpack("<I",struct.pack("<f",x))[0]

def ws_srd(k, d=8, ptr=(4,5)):
    k.e([f"s_mov_b32 s{d}, s{ptr[0]}", f"s_mov_b32 s{d+1}, s{ptr[1]}", f"s_mov_b32 s{d+2}, {hex(WS_SIZE)}", f"s_mov_b32 s{d+3}, 0x20000"])
def layer_srd(k, d=44, ptr=(4,5), off="s34"):
    k.e([f"s_add_u32 s{d}, s{ptr[0]}, {off}", f"s_addc_u32 s{d+1}, s{ptr[1]}, 0", f"s_mov_b32 s{d+2}, {hex(2*LSTRIDE)}", f"s_mov_b32 s{d+3}, 0x20000"])
def layer_aliases(k, base):
    k.aliases=[(f"{base}{l}_kernel",[f"s_mov_b32 s34, {hex(l*LSTRIDE)}"]) for l in range(2)]
def srd(k, d, ptr, size):
    k.e([f"s_mov_b32 s{d}, s{ptr[0]}", f"s_mov_b32 s{d+1}, s{ptr[1]}", f"s_mov_b32 s{d+2}, {hex(size)}", f"s_mov_b32 s{d+3}, 0x20000"])

def cross_half_add(k, v, t):
    k.e([f"v_mov_b32 v{t}, v{v}", "s_nop 1", f"v_permlane32_swap_b32 v{v}, v{t}", "s_nop 1", f"v_add_f32 v{v}, v{v}, v{t}"])

def ln_tile_task(k, layer_tag):
    pass

NWG0=64+64+32
import os
ROT='rot' in os.environ.get('X45','').split('_')
def gen_k0():
    k=Kern("k0_prep_kernel", nvgpr=128, nsgpr=64)
    END="k0_end"
    k.e([f"s_cmp_ge_u32 s2, {NWG0}", f"s_cbranch_scc1 {END}"])
    if 'noself' not in os.environ.get('X0',''):
        k.e(["s_getpc_b64 s[50:51]","v_lshlrev_b32 v100, 6, v0","global_load_dword v101, v100, s[50:51]"])
    if os.environ.get("OFFT"):
        k.nsgpr=100
        k.e(["s_cmp_lg_u32 s2, 0","s_cbranch_scc1 k0_nt","s_load_dwordx2 s[60:61], s[0:1], 56","s_memrealtime s[62:63]","s_waitcnt lgkmcnt(0)","s_add_u32 s60, s60, 5120","s_addc_u32 s61, s61, 0","v_mov_b32 v60, 0","v_mov_b32 v61, s62","global_store_dword v60, v61, s[60:61]","k0_nt:"])
    k.e(["s_load_dwordx2 s[4:5], s[0:1], 64",
         "s_load_dwordx2 s[12:13], s[0:1], 0",
         "s_load_dwordx2 s[16:17], s[0:1], 8",
         "s_load_dwordx2 s[20:21], s[0:1], 16",
         "s_load_dwordx2 s[24:25], s[0:1], 32",
         "s_load_dwordx2 s[28:29], s[0:1], 40",
         "v_lshrrev_b32 v1, 6, v0", "v_and_b32 v0, 63, v0", "s_nop 0", "v_readfirstlane_b32 s3, v1",
         ]); k.stamp(0)
    k.e("s_waitcnt lgkmcnt(0)"); k.stamp(1)
    ws_srd(k,8,(4,5))
    k.e(["v_lshlrev_b32 v1, 4, v0",
         "v_and_b32 v2, 31, v0",
         "v_lshrrev_b32 v3, 5, v0",
         "v_mov_b32 v4, 0x3f803f80"])
    k.e(["s_cmp_lt_u32 s2, 64","s_cbranch_scc1 k0_x",
         "s_cmp_lt_u32 s2, 128","s_cbranch_scc1 k0_qkv"])
    k.e(["s_cmp_lg_u32 s2, 128","s_cbranch_scc1 k0_nz","v_mov_b32 v40, 0","v_mov_b32 v41, 0","v_mov_b32 v42, 0","v_mov_b32 v43, 0"])
    for j in range(5):
        k.e([f"s_add_u32 s14, s3, {4*j}","s_min_u32 s14, s14, 17","s_lshl_b32 s14, s14, 10",f"s_add_u32 s14, s14, {WS_CS1}","buffer_store_dwordx4 v[40:43], v1, s[8:11], s14 offen"])
    k.label("k0_nz")
    k.e(["s_getpc_b64 s[50:51]"]); k.label("k0_pc")
    k.e(["s_add_u32 s50, s50, k1_qkv0_kernel-k0_pc","s_addc_u32 s51, s51, (k1_qkv0_kernel-k0_pc)>>32",
         "s_sub_u32 s52, s2, 128","s_lshr_b32 s52, s52, 3","s_lshl_b32 s52, s52, 2","s_add_u32 s52, s52, s3","s_lshl_b32 s52, s52, 10"])
    for j in range(4):
        k.e([f"s_add_u32 s53, s52, {j*16384}","s_min_u32 s53, s53, k6_red_codeend-k1_qkv0_kernel-1024","v_add_u32 v5, s53, v1",f"global_load_dwordx4 v[{8+4*j}:{11+4*j}], v5, s[50:51]"])
    k.e(f"s_branch {END}")
    k.label("k0_x")
    srd(k,36,(12,13),S*D*2)
    k.e(["s_lshl_b32 s14, s2, 5","v_add_u32 v5, s14, v2","s_movk_i32 s15, 1152","v_mul_lo_u32 v5, v5, s15","v_lshlrev_b32 v6, 3, v3","v_add_u32 v5, v5, v6",
         "s_lshl_b32 s18, s3, 5"])
    X=16
    for m in range(9):
        k.e(f"s_add_u32 s19, s18, {m*128}")
        k.e(f"buffer_load_dwordx2 v[{X+4*m}:{X+4*m+1}], v5, s[36:39], s19 offen")
        k.e(f"buffer_load_dwordx2 v[{X+4*m+2}:{X+4*m+3}], v5, s[36:39], s19 offen offset:16")
    k.e([f"s_mul_i32 s22, s2, {AFB}","s_lshl_b32 s23, s3, 10","s_add_u32 s22, s22, s23"])
    k.stamp(2)
    k.e(["s_waitcnt vmcnt(0)"]); k.stamp(3)
    k.e(["v_lshrrev_b32 v6, 4, v2","v_mul_u32_u24 v6, 18432, v6","v_and_b32 v7, 15, v2","v_lshlrev_b32 v8, 4, v3","v_add_u32 v7, v7, v8","v_lshlrev_b32 v7, 4, v7","v_add_u32 v6, v6, v7",
         f"s_mul_i32 s26, s2, {AFB}","s_lshr_b32 s27, s3, 1","s_lshl_b32 s27, s27, 10","s_add_u32 s26, s26, s27","s_and_b32 s27, s3, 1","s_lshl_b32 s27, s27, 3","s_add_u32 s26, s26, s27",f"s_add_u32 s26, s26, {WS_X0}"])
    k.e(["v_mov_b32 v7, 0","v_mov_b32 v8, 0"])
    for m in range(9):
        for j in range(4): k.e([f"v_dot2c_f32_bf16 v7, v{X+4*m+j}, v4",f"v_dot2c_f32_bf16 v8, v{X+4*m+j}, v{X+4*m+j}"])
    k.e("s_nop 2")
    cross_half_add(k,7,9); cross_half_add(k,8,9)
    k.e(["v_lshlrev_b32 v9, 3, v2","s_lshl_b32 s23, s3, 8","v_add_u32 v10, s23, v9","v_mov_b32 v12, v7","v_mov_b32 v13, v8","ds_write_b64 v10, v[12:13]"])
    for m in range(9):
        k.e(f"buffer_store_dwordx2 v[{X+4*m}:{X+4*m+1}], v6, s[8:11], s26 offen")
        k.e(f"buffer_store_dwordx2 v[{X+4*m+2}:{X+4*m+3}], v6, s[8:11], s26 offen offset:512")
        k.e("s_add_u32 s26, s26, 2048")
    k.e(["s_waitcnt lgkmcnt(0)","s_barrier",
         "ds_read_b64 v[12:13], v9","ds_read_b64 v[14:15], v9 offset:256","ds_read_b64 v[124:125], v9 offset:512","ds_read_b64 v[126:127], v9 offset:768","s_waitcnt lgkmcnt(0)",
         "v_add_f32 v12, v12, v14","v_add_f32 v13, v13, v15","v_add_f32 v124, v124, v126","v_add_f32 v125, v125, v127","v_add_f32 v12, v12, v124","v_add_f32 v13, v13, v125",
         f"v_mul_f32 v11, {fbits(1.0/576)}, v12",
         f"v_mul_f32 v13, {fbits(1.0/576)}, v13","v_fma_f32 v13, -v11, v11, v13","v_max_f32 v13, 0, v13",f"v_add_f32 v13, {fbits(1e-5)}, v13","v_rsq_f32 v13, v13"])
    k.stamp(4)
    Y=52
    for i in range(36):
        k.e([f"v_lshlrev_b32 v{Y+2*i}, 16, v{X+i}", f"v_and_b32 v{Y+2*i+1}, 0xffff0000, v{X+i}",
             f"v_sub_f32 v{Y+2*i}, v{Y+2*i}, v11", f"v_sub_f32 v{Y+2*i+1}, v{Y+2*i+1}, v11"])
    k.stamp(5)
    for i in range(36):
        k.e([f"v_mul_f32 v{Y+2*i}, v{Y+2*i}, v13", f"v_mul_f32 v{Y+2*i+1}, v{Y+2*i+1}, v13", f"v_cvt_pk_bf16_f32 v{X+i}, v{Y+2*i}, v{Y+2*i+1}"])
    for m in range(9):
        k.e(f"s_add_u32 s19, s22, {WS_XN0+m*4096}")
        k.e(f"buffer_store_dwordx4 v[{X+4*m}:{X+4*m+3}], v1, s[8:11], s19 offen")
    k.e(f"s_branch {END}")
    k.label("k0_qkv")
    srd(k,36,(16,17),D*3*D*2)
    k.e(["s_sub_u32 s14, s2, 64","s_lshr_b32 s15, s14, 3","s_and_b32 s14, s14, 7",
         "s_mul_i32 s30, s3, 9216",
         "v_lshrrev_b32 v5, 2, v0","v_and_b32 v6, 3, v0",
         "s_lshl_b32 s18, s15, 2"])
    k.e(["s_add_u32 s19, s18, s14","s_mul_i32 s19, s19, 18","v_lshlrev_b32 v10, 3, v6","v_add_u32 v10, s19, v10","v_add_u32 v11, 560, v10","v_cmp_gt_u32 vcc, 2, v6","s_nop 1","v_cndmask_b32 v10, v11, v10, vcc",
         "s_sub_u32 s19, s14, 5","s_lshl_b32 s19, s19, 5","v_lshlrev_b32 v12, 3, v6","v_add_u32 v12, s19, v12","s_mul_i32 s22, s15, 72","s_add_u32 s22, s22, 1152","v_add_u32 v13, s22, v12",
         "v_mov_b32 v16, 0x20000000","v_cmp_gt_u32 vcc, 72, v12","s_nop 1","v_cndmask_b32 v13, v16, v13, vcc",
         "s_cmp_lt_u32 s14, 4","s_cselect_b64 vcc, -1, 0","v_cndmask_b32 v10, v13, v10, vcc","v_lshlrev_b32 v10, 1, v10",
         "v_mul_u32_u24 v11, 3456, v5","v_add_u32 v10, v10, v11",
         "v_and_b32 v12, 15, v0","v_lshrrev_b32 v13, 1, v12","v_and_b32 v13, 1, v13","v_mul_u32_u24 v13, 576, v13","v_and_b32 v14, 1, v12","v_lshrrev_b32 v15, 2, v12","v_lshlrev_b32 v15, 1, v15","v_add_u32 v14, v14, v15",
         "v_add_u32 v14, s18, v14","v_mul_u32_u24 v14, 18, v14","v_add_u32 v13, v13, v14","v_add_u32 v13, 16, v13","v_cmp_gt_u32 vcc, 8, v12","s_nop 1","v_cndmask_b32 v13, v16, v13, vcc","v_lshlrev_b32 v13, 1, v13",
         "v_lshrrev_b32 v14, 4, v0","v_mul_u32_u24 v14, 3456, v14","v_add_u32 v13, v13, v14",
         "s_mul_i32 s18, s3, %d"%(16*3456),"s_mov_b32 s23, 9","s_mov_b32 s26, s30","s_cmp_eq_u32 s14, 4","s_cbranch_scc1 k0_qkv4"])
    k.label("k0_qkvl")
    k.e(["s_mov_b32 m0, s26","s_add_u32 s26, s26, 1024","buffer_load_dwordx4 v10, s[36:39], s18 offen lds","s_add_u32 s18, s18, %d"%(64*3456),"s_sub_u32 s23, s23, 1","s_cmp_lg_u32 s23, 0","s_cbranch_scc1 k0_qkvl","s_branch k0_qkvp"])
    k.label("k0_qkv4")
    for q in range(4):
        k.e([f"s_add_u32 m0, s26, {q*256}",f"s_add_u32 s19, s18, {q*4*3456}","buffer_load_dword v13, s[36:39], s19 offen lds"])
    k.e(["s_add_u32 s26, s26, 1024","s_add_u32 s18, s18, %d"%(64*3456),"s_sub_u32 s23, s23, 1","s_cmp_lg_u32 s23, 0","s_cbranch_scc1 k0_qkv4"])
    k.label("k0_qkvp")
    k.e(["v_lshrrev_b32 v8, 2, v0","v_and_b32 v8, 3, v8","v_lshlrev_b32 v9, 2, v3","v_add_u32 v8, v8, v9","v_lshlrev_b32 v8, 6, v8",
         "v_lshrrev_b32 v9, 4, v0","v_and_b32 v9, 1, v9","v_lshlrev_b32 v9, 5, v9","v_add_u32 v8, v8, v9","v_and_b32 v9, 3, v0","v_lshlrev_b32 v9, 3, v9","v_add_u32 v8, v8, v9","v_add_u32 v7, s30, v8",
         "s_lshl_b32 s22, s15, 2","s_and_b32 s23, s14, 3","s_add_u32 s22, s22, s23",f"s_mul_i32 s22, s22, {WQKV_WAVE}",
         "s_lshr_b32 s23, s14, 2","s_xor_b32 s23, s23, 1","s_mul_i32 s23, s23, 36","s_add_u32 s23, s23, s3","s_lshl_b32 s23, s23, 10","s_add_u32 s22, s22, s23",f"s_add_u32 s22, s22, {WS_WQKV}",
         "s_mov_b32 s23, 9","s_waitcnt vmcnt(0)"])
    k.label("k0_qkvs")
    k.e(["ds_read_b64_tr_b16 v[16:17], v7","ds_read_b64_tr_b16 v[18:19], v7 offset:512","v_add_u32 v7, 1024, v7","s_waitcnt lgkmcnt(0)",
         "buffer_store_dwordx4 v[16:19], v1, s[8:11], s22 offen","s_add_u32 s22, s22, 4096","s_sub_u32 s23, s23, 1","s_cmp_lg_u32 s23, 0","s_nop 1","s_cbranch_scc1 k0_qkvs"])
    k.label(END)
    if Kern.STAMPS:
        k.stamp(6); k.e("s_waitcnt vmcnt(0)"); k.stamp(7); k.stamp_dump(int(os.environ.get("K0WG","0")))
    k.e("s_endpgm")
    return k, NWG0, 256, 40960
```

```python
from asmlib import *
from layout import *
from k0 import fbits, ws_srd, layer_srd, layer_aliases
import wconv, os
LS="s[44:47]"
Q1=8; Q2=12; K1=16; K2=20; V0=24; V1=28; S=(32,48); P=64; O=72
AK1=4; AK2=5; AV=6
def mf16(d,a,b,c): return f"v_mfma_f32_32x32x16_bf16 v[{d}:{d+15}], v[{a}:{a+3}], v[{b}:{b+3}], {c}"
def mf8(d,a,b,c): return f"v_mfma_f32_32x32x8_bf16 v[{d}:{d+15}], v[{a}:{a+1}], v[{b}:{b+1}], {c}"
def acc(d): return f"v[{d}:{d+15}]"
def tile_body(t):
    c=S[t&1]; n=S[(t+1)&1]
    ex=lambda i: f"v_exp_f32 v{c+i}, v{c+i}"
    cv=lambda j: f"v_cvt_pk_bf16_f32 v{P+j}, v{c+2*j}, v{c+2*j+1}"
    o=[]
    o+=[ex(0),ex(1), mf16(O,V1,P+4,acc(O)),
        f"ds_read_b128 v[{V0}:{V0+3}], v{AV} offset:{t*KVREC}", f"ds_read_b128 v[{V1}:{V1+3}], v{AV} offset:{t*KVREC+640}",
        ex(2),ex(3),cv(0),"s_waitcnt lgkmcnt(2)", mf16(n,K1,Q1,"0"),
        ex(4),ex(5),cv(1),ex(6),ex(7), mf8(n,K2,Q2,acc(n)),
        f"ds_read_b128 v[{K1}:{K1+3}], v{AK1} offset:{(t+2)*KVREC}", f"ds_read_b32 v{K2}, v{AK2} offset:{(t+2)*KVREC}",
        cv(2),ex(8),cv(3),ex(9),ex(10),"s_waitcnt lgkmcnt(2)", mf16(O,V0,P,acc(O)),
        ex(11),cv(4),ex(12),ex(13),cv(5),ex(14),ex(15),cv(6),cv(7)]
    import os
    X=os.environ.get('X2','')
    if 'nolds' in X: o=[x for x in o if not x.startswith(('ds_read','s_waitcnt'))]
    if 'nowait' in X: o=[x for x in o if not x.startswith('s_waitcnt')]
    if 'nomfma' in X: o=[x for x in o if not x.startswith('v_mfma')]
    if 'nok2' in X: o=[x for x in o if not x.startswith('ds_read_b32')]
    return o
def gen_k2():
    k=Kern("k2_attn", nvgpr=128, nsgpr=64); layer_aliases(k,"k2_attn")
    B=CUR; END=k.name+"_end"
    k.e([f"s_cmp_ge_u32 s2, 256", f"s_cbranch_scc1 {END}",
         "s_load_dwordx2 s[4:5], s[0:1], 64"]); k.stamp(0)
    k.e(["v_lshrrev_b32 v1, 6, v0","v_and_b32 v0, 63, v0","s_nop 0","v_readfirstlane_b32 s3, v1",
         "v_lshlrev_b32 v1, 4, v0","v_and_b32 v2, 31, v0","v_lshrrev_b32 v3, 5, v0",
         "s_and_b32 s12, s2, 7","s_lshl_b32 s12, s12, 2","s_lshr_b32 s13, s2, 3","s_and_b32 s13, s13, 3","s_add_u32 s12, s12, s13",
         "s_lshr_b32 s13, s2, 5","s_lshl_b32 s13, s13, 3","s_add_u32 s13, s13, s3",
         "s_lshl_b32 s14, s12, 16","s_lshl_b32 s15, s13, 10","s_add_u32 s14, s14, s15",f"s_add_u32 s14, s14, {B+L_Q1}",
         "s_lshl_b32 s15, s12, 13","s_lshl_b32 s16, s13, 7","s_add_u32 s15, s15, s16",f"s_add_u32 s15, s15, {B+L_Q2}",
         "v_lshlrev_b32 v7, 2, v2","v_mov_b32 v93, 0x7f000000","v_cmp_gt_u32 vcc, 32, v0",
         f"s_mul_i32 s16, s12, {KV_HEAD}","s_lshl_b32 s17, s3, 10","s_add_u32 s16, s16, s17",f"s_add_u32 s16, s16, {B+L_KV}",
         "v_cndmask_b32 v93, v93, v7, vcc",
         "s_waitcnt lgkmcnt(0)"])
    k.stamp(1)
    layer_srd(k); ws_srd(k,8,(4,5))
    HELP=k.name+"_help"
    k.e(["s_cmp_ge_u32 s3, 8",f"s_cbranch_scc1 {HELP}"])
    k.e([f"buffer_load_dwordx4 v[{Q1}:{Q1+3}], v1, {LS}, s14 offen", f"buffer_load_dword v{Q2}, v93, {LS}, s15 offen"])
    def dma(n):
        if n<13: return [f"s_add_u32 m0, s17, {n*8192}", f"s_add_u32 s18, s16, {n*8192}", f"buffer_load_dwordx4 v1, {LS}, s18 offen lds"]
        return [f"s_add_u32 s18, s3, {8*n}","s_min_u32 s18, s18, 109","s_lshl_b32 s18, s18, 10","s_mov_b32 m0, s18","s_add_u32 s18, s18, s19", f"buffer_load_dwordx4 v1, {LS}, s18 offen lds"]
    k.e("s_sub_u32 s19, s16, s17")
    for n in range(3): k.e(dma(n))
    k.e([f"v_mov_b32 v{AK1}, v1", f"v_add_u32 v{AK2}, 2304, v7", "v_mul_u32_u24 v94, 320, v3","v_min_u32 v95, 19, v2","v_lshlrev_b32 v95, 4, v95","v_add_u32 v94, v94, v95",f"v_add_u32 v{AV}, 1024, v94",
         f"v_mov_b32 v{Q2+1}, 0", f"v_mov_b32 v{K2+1}, 0"])
    for i in range(16): k.e(f"v_mov_b32 v{O+i}, 0")
    for i in range(4): k.e([f"v_mov_b32 v{P+4+i}, 0", f"v_mov_b32 v{V1+i}, 0"])
    k.e(["s_waitcnt vmcnt(0)","s_barrier"]); k.stamp(2)
    k.e([f"ds_read_b128 v[{K1}:{K1+3}], v{AK1}", f"ds_read_b32 v{K2}, v{AK2}", "s_waitcnt lgkmcnt(0)",
         mf16(S[0],K1,Q1,"0"), mf8(S[0],K2,Q2,acc(S[0])),
         f"ds_read_b128 v[{K1}:{K1+3}], v{AK1} offset:{KVREC}", f"ds_read_b32 v{K2}, v{AK2} offset:{KVREC}",
         "s_nop 10"])
    LOOP=k.name+"_loop"
    for t in range(8):
        b=tile_body(t)
        if t<4:
            ex=[]
            for n in range(3+3*t,min(6+3*t,14)): ex+=dma(n)
            b=b[:5]+ex[:6]+b[5:17]+ex[6:]+b[17:]
        k.e(b)
    adv=[f"v_add_u32 v{AK1}, {8*KVREC}, v{AK1}", f"v_add_u32 v{AK2}, {8*KVREC}, v{AK2}", f"v_add_u32 v{AV}, {8*KVREC}, v{AV}"]
    k.e(adv+["s_waitcnt vmcnt(0)","s_barrier","s_mov_b32 s20, 1"]); k.stamp(3)
    body=[]
    for t in range(8): body+=tile_body(t)
    k.e(".p2align 6")
    k.label(LOOP)
    import os
    if 'prio' in os.environ.get('X2','').split('_'):
        PA=k.newlabel("pa"); PB=k.newlabel("pb")
        k.e(["s_lshr_b32 s23, s3, 2","s_xor_b32 s23, s23, s20","s_and_b32 s23, s23, 1",f"s_cbranch_scc1 {PA}","s_setprio 0",f"s_branch {PB}"])
        k.label(PA); k.e("s_setprio 1"); k.label(PB)
    k.e(body)
    NOB=k.newlabel("nob")
    k.e(adv+["s_sub_u32 s21, s20, 3","s_cmp_lt_u32 s21, 2",f"s_cbranch_scc0 {NOB}","s_barrier"]); k.label(NOB)
    k.e(["s_add_u32 s20, s20, 1","s_cmp_lt_u32 s20, 8",f"s_cbranch_scc1 {LOOP}"])
    k.e(["s_setprio 0", mf16(O,V1,P+4,acc(O))]); k.stamp(4)
    k.e(["s_waitcnt lgkmcnt(0)","s_nop 10"])
    CHK=k.name+"_chk"; FIN=k.name+"_fin"; SLOW=k.name+"_slow"
    def lbcast():
        k.e([f"v_mov_b32 v32, v{O+10}", f"v_mov_b32 v33, v{O+10}", "s_nop 1", "v_permlane32_swap_b32 v32, v33", "s_nop 1"])
    lbcast()
    k.e([f"v_mov_b32 v34, {fbits(2.0**-64)}", f"v_mov_b32 v35, {fbits(2.0**64)}", f"v_mov_b32 v36, {fbits(2.0**126)}",
         "v_cmp_ge_f32 s[22:23], v32, v34","v_cmp_le_f32 s[24:25], v32, v35","s_nop 1","s_and_b64 s[22:23], s[22:23], s[24:25]"])
    for i in range(8):
        k.e([f"v_cmp_lt_f32 s[24:25], |v{O+i}|, v36","s_nop 1","s_and_b64 s[22:23], s[22:23], s[24:25]"])
    k.e(["v_cmp_lt_u32 s[26:27], 31, v0"])
    for i in (8,9):
        k.e([f"v_cmp_lt_f32 s[24:25], |v{O+i}|, v36","s_nop 1","s_or_b64 s[24:25], s[24:25], s[26:27]","s_and_b64 s[22:23], s[22:23], s[24:25]"])
    k.e(["s_cmp_eq_u64 s[22:23], -1", f"s_cbranch_scc0 {SLOW}"])
    k.label(FIN)
    k.e(["v_rcp_f32 v33, v32","s_nop 0"])
    for i in range(10): k.e(f"v_mul_f32 v{O+i}, v{O+i}, v33")
    for j in range(5): k.e(f"v_cvt_pk_bf16_f32 v{40+j}, v{O+2*j}, v{O+2*j+1}")
    k.e([f"s_mul_i32 s14, s13, {AFB}","s_lshl_b32 s15, s12, 10","s_add_u32 s15, s15, s14",f"s_add_u32 s15, s15, {B+L_O}",
         "buffer_store_dwordx4 v[40:43], v1, s[44:47], s15 offen",
         "s_lshr_b32 s16, s12, 3","s_add_u32 s16, s16, 32","s_lshl_b32 s16, s16, 10","s_add_u32 s16, s16, s14",
         "s_lshr_b32 s17, s12, 2","s_and_b32 s17, s17, 1","s_lshl_b32 s17, s17, 9","s_add_u32 s16, s16, s17",
         "s_and_b32 s17, s12, 3","s_lshl_b32 s17, s17, 2","s_add_u32 s16, s16, s17",f"s_add_u32 s16, s16, {B+L_O}",
         "v_lshlrev_b32 v7, 4, v2","v_mov_b32 v93, 0x7f000000","v_cmp_gt_u32 vcc, 32, v0","s_nop 1","v_cndmask_b32 v93, v93, v7, vcc",
         "buffer_store_dword v44, v93, s[44:47], s16 offen"])
    k.stamp(5); k.stamp_dump()
    k.e(f"s_branch {END}")
    k.label(SLOW)
    k.e([f"v_mov_b32 v{AK1}, v1","v_lshlrev_b32 v7, 2, v2",f"v_add_u32 v{AK2}, 2304, v7", "v_mul_u32_u24 v94, 320, v3","v_min_u32 v95, 19, v2","v_lshlrev_b32 v95, 4, v95","v_add_u32 v94, v94, v95",f"v_add_u32 v{AV}, 1024, v94",
         "v_mov_b32 v90, 0xff7fffff","s_mov_b32 s20, 0"])
    for i in range(16): k.e(f"v_mov_b32 v{O+i}, 0")
    SL=k.name+"_sl"
    k.label(SL)
    c=S[0]
    k.e([f"ds_read_b128 v[{K1}:{K1+3}], v{AK1}", f"ds_read_b32 v{K2}, v{AK2}", f"ds_read_b128 v[{V0}:{V0+3}], v{AV}", f"ds_read_b128 v[{V1}:{V1+3}], v{AV} offset:640",
         "s_waitcnt lgkmcnt(0)", mf16(c,K1,Q1,"0"), mf8(c,K2,Q2,acc(c)), "s_nop 11"])
    k.e(f"v_max_f32 v91, v{c}, v{c+1}")
    for i in range(2,16,2): k.e(f"v_max3_f32 v91, v91, v{c+i}, v{c+i+1}")
    k.e(["v_mov_b32 v92, v91","s_nop 1","v_permlane32_swap_b32 v91, v92","s_nop 1","v_max3_f32 v91, v91, v92, v90",
         "v_sub_f32 v92, v90, v91","v_exp_f32 v92, v92","v_mov_b32 v90, v91","s_nop 0"])
    for i in range(16): k.e(f"v_mul_f32 v{O+i}, v{O+i}, v92")
    for i in range(16): k.e(f"v_sub_f32 v{c+i}, v{c+i}, v91")
    for i in range(16): k.e(f"v_exp_f32 v{c+i}, v{c+i}")
    k.e("s_nop 0")
    for j in range(8): k.e(f"v_cvt_pk_bf16_f32 v{P+j}, v{c+2*j}, v{c+2*j+1}")
    k.e(["s_nop 1", mf16(O,V0,P,acc(O)), mf16(O,V1,P+4,acc(O)),
         f"v_add_u32 v{AK1}, {KVREC}, v{AK1}", f"v_add_u32 v{AK2}, {KVREC}, v{AK2}", f"v_add_u32 v{AV}, {KVREC}, v{AV}",
         "s_nop 9","s_add_u32 s20, s20, 1","s_cmp_lt_u32 s20, 64",f"s_cbranch_scc1 {SL}","s_nop 4"])
    lbcast()
    k.e(f"s_branch {FIN}")
    k.e(f"s_branch {END}")
    k.label(HELP)
    H1=k.name+"_h1"; H2=k.name+"_h2"
    k.e(["s_sub_u32 s36, s3, 8","s_sub_u32 s37, s16, s17",
         "s_add_u32 s38, s36, 110"])
    def kv2():
        for n in range(11):
            k.e([f"s_add_u32 s18, s38, {4*n}","s_min_u32 s18, s18, 151","s_lshl_b32 s18, s18, 10","s_mov_b32 m0, s18","s_add_u32 s18, s18, s37",f"buffer_load_dwordx4 v1, {LS}, s18 offen lds"])
    k.e(["s_cmp_eq_u32 s34, 0",f"s_cbranch_scc0 {H1}"])
    def hb(i):
        if i==-1: k.e(["s_barrier","s_barrier"])
        else: k.stamp(2); k.e(["s_barrier"])
    wconv.emit(k,112640,hb)
    kv2()
    k.e(f"s_branch {H2}")
    k.label(H1)
    k.e(["s_barrier","s_barrier"])
    kv2()
    k.e(["s_barrier"])
    k.label(H2)
    k.stamp(3)
    k.e(["s_waitcnt vmcnt(0)"]); k.stamp(4); k.e("s_barrier"); k.stamp(5)
    k.code_prefetch("k3_wo0_kernel","k6_red_codeend",4,96,wave="s36")
    if Kern.STAMPS:
        LL=k.newlabel("hs"); k.e(["s_cmp_lg_u32 s3, 8",f"s_cbranch_scc1 {LL}"]); k.stamp_dump(); k.label(LL)
    k.label(END); k.e("s_endpgm")
    p=check_hazards(body+body,k.name+"(loop)")
    for x in p: print("HAZARD",x)
    return k,256,768,163840
```

```python
from asmlib import *
from layout import *
from k0 import srd, cross_half_add, ROT
HW="s36"
SLOT=12288
CSP=162816
def emit(k, LB, bar):
    P=k.name+"_wc"; ST=" sc1"
    k.e(["s_load_dwordx2 s[20:21], s[0:1], 16","s_load_dwordx2 s[24:25], s[0:1], 32","s_load_dwordx2 s[28:29], s[0:1], 40",
         "v_mov_b32 v4, 0x3f803f80","v_lshrrev_b32 v5, 3, v0","v_and_b32 v6, 7, v0","v_lshlrev_b32 v6, 4, v6",
         f"s_mul_i32 s31, {HW}, {SLOT}",f"s_add_u32 s31, s31, {LB}",
         "v_lshrrev_b32 v15, 4, v0","v_lshlrev_b32 v15, 2, v15","v_lshrrev_b32 v16, 2, v0","v_and_b32 v16, 3, v16","v_add_u32 v15, v15, v16","v_lshlrev_b32 v15, 7, v15",
         "v_and_b32 v16, 3, v0","v_lshlrev_b32 v16, 3, v16","v_add_u32 v15, v15, v16","v_add_u32 v17, s31, v15",
         "s_waitcnt lgkmcnt(0)","s_setprio 3"])
    bar(-1)
    k.e(["s_cmp_lt_u32 s2, 144",f"s_cbranch_scc1 {P}_w1i","s_cmp_lt_u32 s2, 252",f"s_cbranch_scc1 {P}_w2i",f"s_branch {P}_issued"])
    k.label(P+"_w1i")
    srd(k,40,(24,25),D*F*2)
    k.e(["s_lshr_b32 s14, s2, 1","s_and_b32 s15, s2, 1","s_mul_i32 s15, s15, 9",f"s_add_u32 s35, s15, {HW}",
         "s_add_u32 s39, s15, 9",
         "s_movk_i32 s15, 9216","v_mul_lo_u32 v10, v5, s15","v_add_u32 v10, v10, v6",
         "s_lshl_b32 s18, s14, 7",f"s_mul_i32 s19, s35, {32*9216}","s_add_u32 s18, s18, s19","s_mov_b32 s26, s31","s_mov_b32 s23, s35"])
    k.label(P+"_w1l")
    for q in range(4):
        k.e([f"s_add_u32 m0, s26, {q*1024}",f"s_add_u32 s19, s18, {q*8*9216}","buffer_load_dwordx4 v10, s[40:43], s19 offen lds"])
    k.e(["s_add_u32 s26, s26, 4096",f"s_add_u32 s18, s18, {128*9216}","s_add_u32 s23, s23, 4","s_cmp_lt_u32 s23, s39",f"s_cbranch_scc1 {P}_w1l"])
    k.e(["s_cmp_ge_u32 s2, 108",f"s_cbranch_scc1 {P}_issued",f"s_cmp_eq_u32 {HW}, 0",f"s_cbranch_scc1 {P}_issued"])
    srd(k,52,(20,21),D*D*2)
    assert all((x*1821>>14)==x//9 for x in range(324))
    k.e(["s_mul_i32 s22, s2, 3",f"s_add_u32 s22, s22, {HW}","s_sub_u32 s22, s22, 1","s_mul_i32 s56, s22, 1821","s_lshr_b32 s56, s56, 14","s_mul_i32 s57, s56, 9","s_sub_u32 s57, s22, s57"])
    for q in range(2):
        k.e([f"v_add_u32 v11, {8*q}, v5","s_mul_i32 s18, s56, 18","v_add_u32 v12, s18, v11",
             "v_lshrrev_b32 v13, 2, v11","v_and_b32 v13, 1, v13","v_lshlrev_b32 v13, 2, v13",
             "v_and_b32 v14, 3, v11",f"v_add_u32 v14, {4*q}, v14","v_lshrrev_b32 v19, 1, v14","v_add_u32 v13, v13, v19",
             "s_sub_u32 s18, s56, 32","s_lshl_b32 s18, s18, 3","v_add_u32 v13, s18, v13","v_mul_u32_u24 v13, 18, v13","v_and_b32 v14, 1, v14","v_add_u32 v13, v13, v14","v_add_u32 v13, 16, v13",
             "s_cmp_lt_u32 s56, 32","s_cselect_b64 vcc, -1, 0","v_cndmask_b32 v12, v13, v12, vcc",
             "s_movk_i32 s15, 1152","v_mul_lo_u32 v12, v12, s15","v_add_u32 v12, v12, v6",
             "s_lshl_b32 s19, s57, 7",f"s_add_u32 m0, s31, {8192+q*1024}","s_nop 0","buffer_load_dwordx4 v12, s[52:55], s19 offen lds"])
    k.e(f"s_branch {P}_issued")
    k.label(P+"_w2i")
    srd(k,40,(28,29),F*D*2)
    assert all((x*3641>>15)==x//9 for x in range(1296))
    k.e(["s_sub_u32 s14, s2, 144","s_mul_i32 s14, s14, 12",f"s_mul_i32 s15, {HW}, 3","s_add_u32 s35, s14, s15",
         "s_movk_i32 s15, 1152","v_mul_lo_u32 v10, v5, s15","v_add_u32 v10, v10, v6","s_mov_b32 s26, s31"])
    for m in range(3):
        k.e([f"s_add_u32 s22, s35, {m}","s_mul_i32 s23, s22, 3641","s_lshr_b32 s23, s23, 15","s_mul_i32 s27, s23, 9","s_sub_u32 s27, s22, s27",
             f"s_mul_i32 s18, s23, {32*1152}","s_lshl_b32 s19, s27, 7","s_add_u32 s18, s18, s19"])
        for q in range(4):
            k.e([f"s_add_u32 m0, s31, {m*4096+q*1024}",f"s_add_u32 s19, s18, {q*8*1152}","buffer_load_dwordx4 v10, s[40:43], s19 offen lds"])
    k.label(P+"_issued")
    k.stamp(1)
    k.e("s_waitcnt vmcnt(0)"); k.stamp(6)
    k.e(["s_cmp_lt_u32 s2, 144",f"s_cbranch_scc1 {P}_w1p0","s_cmp_lt_u32 s2, 252",f"s_cbranch_scc1 {P}_w2p0",f"s_branch {P}_done"])
    k.label(P+"_w1p0")
    k.e(["s_mul_i32 s22, s14, 57","s_lshr_b32 s22, s22, 9","s_mul_i32 s23, s22, 9","s_sub_u32 s23, s14, s23",
         f"s_mul_i32 s26, s22, {4*W12_WAVE}","s_mul_i32 s27, s23, 18432","s_add_u32 s26, s26, s27",f"s_add_u32 s26, s26, {WS_W12}",
         "s_and_b32 s28, s22, 1" if ROT else "s_mov_b32 s28, 0","s_mul_i32 s28, s28, 9",
         "v_mov_b32 v40, 0","v_mov_b32 v41, 0","v_mov_b32 v42, 0","v_mov_b32 v43, 0","s_mov_b32 s27, s35"])
    k.label(P+"_w1p")
    for f in range(4):
        k.e([f"ds_read_b64_tr_b16 v[{20+4*f}:{21+4*f}], v17 offset:{f*32}",f"ds_read_b64_tr_b16 v[{22+4*f}:{23+4*f}], v17 offset:{f*32+2048}"])
    k.e(["s_add_u32 s29, s27, s28","s_sub_u32 s33, s29, 18","s_cmp_ge_u32 s29, 18","s_cselect_b32 s29, s33, s29","s_lshl_b32 s29, s29, 10","s_add_u32 s29, s29, s26","s_waitcnt lgkmcnt(0)"])
    for f in range(4):
        k.e([f"s_add_u32 s19, s29, {f*W12_WAVE}",f"buffer_store_dwordx4 v[{20+4*f}:{23+4*f}], v1, s[8:11], s19 offen{ST}"])
        for j in range(4): k.e(f"v_dot2c_f32_bf16 v{40+f}, v{20+4*f+j}, v4")
    k.e(["v_add_u32 v17, 4096, v17","s_add_u32 s27, s27, 4","s_cmp_lt_u32 s27, s39",f"s_cbranch_scc1 {P}_w1p","s_nop 2"])
    for f in range(4):
        k.e([f"v_mov_b32 v44, v{40+f}","s_nop 1",f"v_permlane16_swap_b32 v{40+f}, v44","s_nop 1",f"v_add_f32 v{40+f}, v{40+f}, v44"])
        cross_half_add(k,40+f,44)
    k.e(["v_lshrrev_b32 v45, 4, v0","v_cmp_eq_u32 vcc, 1, v45","s_nop 1","v_cndmask_b32 v40, v40, v41, vcc","v_cmp_eq_u32 vcc, 2, v45","s_nop 1","v_cndmask_b32 v40, v40, v42, vcc","v_cmp_eq_u32 vcc, 3, v45","s_nop 1","v_cndmask_b32 v40, v40, v43, vcc",
         "v_lshlrev_b32 v14, 2, v0",f"s_lshl_b32 s19, {HW}, 8",f"s_add_u32 s19, s19, {CSP}","v_add_u32 v15, s19, v14","ds_write_b32 v15, v40"])
    k.e(["s_cmp_ge_u32 s2, 108",f"s_cbranch_scc1 {P}_wdone",f"s_cmp_eq_u32 {HW}, 0",f"s_cbranch_scc1 {P}_wdone",
         "v_lshrrev_b32 v8, 2, v0","v_and_b32 v8, 3, v8","v_lshlrev_b32 v9, 2, v3","v_add_u32 v8, v8, v9","v_lshlrev_b32 v8, 7, v8",
         "v_lshrrev_b32 v9, 4, v0","v_and_b32 v9, 1, v9","v_lshlrev_b32 v9, 5, v9","v_add_u32 v8, v8, v9",
         "v_and_b32 v9, 3, v0","v_lshlrev_b32 v9, 3, v9","v_add_u32 v8, v8, v9","s_add_u32 s19, s31, 8192","v_add_u32 v7, s19, v8"])
    for f in range(2):
        k.e([f"ds_read_b64_tr_b16 v[{20+4*f}:{21+4*f}], v7 offset:{f*64}",f"ds_read_b64_tr_b16 v[{22+4*f}:{23+4*f}], v7 offset:{f*64+1024}"])
    k.e(["s_lshl_b32 s19, s57, 1",f"s_mul_i32 s19, s19, {AFB}","s_lshl_b32 s22, s56, 10","s_add_u32 s19, s19, s22",f"s_add_u32 s19, s19, {WS_WO}","s_waitcnt lgkmcnt(0)",
         f"buffer_store_dwordx4 v[20:23], v1, s[8:11], s19 offen{ST}",f"s_add_u32 s19, s19, {AFB}",f"buffer_store_dwordx4 v[24:27], v1, s[8:11], s19 offen{ST}"])
    k.label(P+"_wdone")
    k.e(["s_waitcnt lgkmcnt(0)",f"s_branch {P}_done"])
    k.label(P+"_w2p0")
    assert all((x*57>>10)==x//18 for x in range(144))
    for m in range(3):
        for f in range(4):
            k.e([f"ds_read_b64_tr_b16 v[{20+4*f}:{21+4*f}], v17 offset:{m*4096+f*32}",f"ds_read_b64_tr_b16 v[{22+4*f}:{23+4*f}], v17 offset:{m*4096+f*32+2048}"])
        k.e([f"s_add_u32 s22, s35, {m}","s_mul_i32 s23, s22, 3641","s_lshr_b32 s23, s23, 15","s_mul_i32 s27, s23, 9","s_sub_u32 s27, s22, s27",
             "s_mul_i32 s22, s23, 57","s_lshr_b32 s22, s22, 10","s_mul_i32 s26, s22, 18","s_sub_u32 s23, s23, s26",
             f"s_mul_i32 s26, s22, {4*W12_WAVE}","s_add_u32 s23, s23, 162","s_lshl_b32 s23, s23, 10","s_add_u32 s26, s26, s23",f"s_add_u32 s26, s26, {WS_W12}"])
        for f in range(4):
            k.e(["s_lshl_b32 s28, s27, 1",f"s_add_u32 s28, s28, {f>>1}","s_and_b32 s28, s28, 3","s_lshr_b32 s29, s27, 1","s_lshl_b32 s29, s29, 1",f"s_add_u32 s29, s29, {f&1}",
                 "s_cmp_eq_u32 s27, 8",f"s_cselect_b32 s28, {f}, s28","s_cselect_b32 s29, 8, s29",
                 f"s_mul_i32 s28, s28, {W12_WAVE}","s_mul_i32 s29, s29, 18432","s_add_u32 s28, s28, s29",f"s_add_u32 s{48+f}, s28, s26"])
        k.e("s_waitcnt lgkmcnt(0)")
        for f in range(4): k.e(f"buffer_store_dwordx4 v[{20+4*f}:{23+4*f}], v1, s[8:11], s{48+f} offen{ST}")
        k.e("s_nop 1")
    k.label(P+"_done")
    bar(1)
    k.e(["s_cmp_ge_u32 s2, 144",f"s_cbranch_scc1 {P}_fin",f"s_cmp_lg_u32 {HW}, 0",f"s_cbranch_scc1 {P}_fin",
         "v_lshlrev_b32 v14, 2, v0",f"v_add_u32 v15, {CSP}, v14",
         "ds_read_b32 v16, v15","ds_read_b32 v17, v15 offset:256","ds_read_b32 v18, v15 offset:512","ds_read_b32 v19, v15 offset:768","s_waitcnt lgkmcnt(0)",
         "v_add_f32 v16, v16, v17","v_add_f32 v18, v18, v19","v_add_f32 v16, v16, v18",
         "s_lshr_b32 s19, s2, 1","s_lshl_b32 s19, s19, 8",f"s_add_u32 s19, s19, {WS_CS1}","buffer_atomic_add_f32 v16, v14, s[8:11], s19 offen"])
    k.label(P+"_fin")
```

```python
import sys, importlib
from asmlib import *
from layout import *
import k0
HEADER=open('interleave_layers__mha_block__dense_activation_silu__prompt.s.ref').read().split('\n')
hdr=[l for l in HEADER if l.startswith(';') and '@launch' not in l and 'Override' not in l and 'grid=ceil' not in l]
hdr=hdr[:10]
import os
if os.environ.get('STAMPS'): Kern.STAMPS=True
def main(out, upto=99):
    kerns=[]; launches=[]
    def add(t, names=None):
        k,n,b,l=t
        if k not in kerns: kerns.append(k)
        launches.append((k.name,n,b,l))
    import k1,k2,k3,k45,k6
    K0=k0.gen_k0(); add(K0)
    gens=[k1.gen_k1(),k2.gen_k2(),k3.gen_k3(),k45.gen_k45(),k6.gen_k6()]
    for j,(k,n,b,l) in enumerate(gens): k.launch_idx=[1+j,6+j]
    for layer in range(2):
        for k,n,b,l in gens:
            if k not in kerns: kerns.append(k)
            launches.append((k.aliases[layer][0],n,b,l))
    bad=0
    for k in kerns:
        p=check_hazards(k.l,k.name)
        for x in p[:30]: print("HAZARD",x)
        bad+=len(p)
    hack=os.environ.get("HACK","")
    for k in kerns:
        if hack:
            for nm in hack.split(","):
                if nm in k.name:
                    k.l=[x for x in k.l if not (x.startswith("buffer_store_dwordx2") or x.startswith("buffer_store_dword "))]
                    k.l=[(x+" sc1" if x.startswith("buffer_store") and "sc1" not in x else x) for x in k.l]
    txt=build_file(kerns,launches,hdr)
    for j,(k,n,b,l) in enumerate(gens):
        for lay in range(2): txt=txt.replace(f'LAUNCHOFF_{k.name}_{lay}',str((10-k.launch_idx[lay])*512))
    open(out,"w").write(txt)
    print("wrote",out,len(txt),"bytes; hazards:",bad, "launches:",[(l[0],l[1],l[2],l[3]) for l in launches])
if __name__=="__main__":
    main(sys.argv[1] if len(sys.argv)>1 else "interleave_layers__mha_block__dense_activation_silu__prompt.s")
```

```python
from asmlib import *
from layout import *
from gemm import *
from k0 import fbits, ws_srd, layer_srd, layer_aliases
import os
LS="s[44:47]"
def xdma(k, i, nw, sbase_lds, sbase_g, srd=LS, tmp="s16"):
    return [f"s_add_u32 m0, {sbase_lds}, {i*nw*1024}", f"s_add_u32 {tmp}, {sbase_g}, {i*nw*1024}",
            ("vm",f"buffer_load_dwordx4 v1, {srd}, {tmp} offen lds",("X",i))]
X1=os.environ.get('X1','qlv')
MQ=' sc1' if 'q' in X1 else ''; ML=' sc1' if 'l' in X1 else ''; MV=' sc1' if 'v' in X1 else ''
def gen_k1():
    k=Kern("k1_qkv", nvgpr=256, nagpr=256, nsgpr=64); layer_aliases(k,"k1_qkv")
    END=k.name+"_end"
    k.e([f"s_cmp_ge_u32 s2, 256", f"s_cbranch_scc1 {END}",
         "s_load_dwordx2 s[4:5], s[0:1], 64"]); k.stamp(0)
    k.e(["v_lshrrev_b32 v1, 6, v0","v_and_b32 v0, 63, v0","s_nop 0","v_readfirstlane_b32 s3, v1",
         "v_lshlrev_b32 v1, 4, v0","v_and_b32 v2, 31, v0","v_lshrrev_b32 v3, 5, v0","v_add_u32 v4, 32768, v1",
         "s_lshr_b32 s16, s2, 3","s_and_b32 s13, s2, 1","s_lshl_b32 s13, s13, 2","s_and_b32 s17, s16, 3","s_add_u32 s13, s13, s17",
         "s_lshr_b32 s12, s2, 1","s_and_b32 s12, s12, 3","s_lshl_b32 s12, s12, 3","s_lshr_b32 s16, s16, 2","s_add_u32 s12, s12, s16",
         "s_and_b32 s15, s3, 1",f"s_mul_i32 s15, s15, {AFB}","s_lshr_b32 s14, s3, 1","s_lshl_b32 s14, s14, 10","s_add_u32 s15, s15, s14",
         f"s_mul_i32 s14, s12, {2*AFB}",f"s_add_u32 s14, s14, {L_XN2}","s_add_u32 s14, s14, s15",
         "s_lshl_b32 s20, s13, 2","s_add_u32 s20, s20, s3",f"s_mul_i32 s20, s20, {WQKV_WAVE}",f"s_add_u32 s20, s20, {WS_WQKV}",
         "s_waitcnt lgkmcnt(0)"])
    k.stamp(1)
    layer_srd(k); ws_srd(k,8,(4,5))
    RING=16; R=18; ACC0=96; ACC1=128; BT=160
    st=Stream(k,RING,R,72,btail=BT)
    k.e(["s_cmp_eq_u32 s3, 0","s_cselect_b32 s17, 16, 32","s_cmp_eq_u32 s3, 3","s_cselect_b32 s17, 8, s17","v_mov_b32 v11, 0x7f000000","v_cmp_gt_u32 vcc, s17, v2","s_nop 1","v_cndmask_b32 v11, v11, v1, vcc"])
    if True: st.voff_fn=lambda n: "v11" if n<36 else "v1"
    def xd(i): return [f"s_add_u32 m0, s15, {i*2048}", f"s_add_u32 s16, s14, {i*2048}", ("vm",f"buffer_load_dwordx4 v1, {LS}, s16 offen lds",("X",i))]
    for i in range(6):
        for it in xd(i): st.place(it)
    st.prefetch(9)
    for i in range(6,18):
        for it in xd(i): st.place(it)
    k.e(["s_lshl_b32 s21, s13, 2","s_add_u32 s22, s21, s3",
         "s_lshl_b32 s23, s12, 1",
         "s_lshl_b32 s24, s22, 16","s_lshl_b32 s25, s23, 10","s_add_u32 s24, s24, s25",f"s_add_u32 s24, s24, {CUR+L_Q1}",
         f"s_mul_i32 s25, s22, {KV_HEAD}",f"s_mul_i32 s26, s23, {KVREC}","s_add_u32 s25, s25, s26",f"s_add_u32 s25, s25, {CUR+L_KV}",
         f"s_mov_b32 s27, {fbits(QSCALE)}"])
    k.vm_wait(("X",5)); k.e("s_barrier"); k.stamp(2)
    bj=lambda u,kap: f"ds_read_b128 {st.breg(u,kap)}, v1 offset:{u*AFB+kap*1024}" if u*AFB+kap*1024<65536 else f"ds_read_b128 {st.breg(u,kap)}, v4 offset:{u*AFB+kap*1024-32768}"
    LA=3
    at={12-LA:[("vmwait",("X",11)),"s_barrier"],24-LA:[("vmwait",("X",17)),"s_barrier"]}
    PK=192
    QS=19456
    LV=k.name+"_v"; FIN=k.name+"_fin"
    addr_left=["v_mov_b32 v5, 1.0","v_mov_b32 v6, s27","v_cmp_gt_u32 vcc, 32, v0","s_nop 1","v_cndmask_b32 v5, v5, v6, vcc",
         "v_lshlrev_b32 v8, 2, v2","v_add_u32 v7, 2304, v8",f"v_add_u32 v6, {QS}, v8","v_cndmask_b32 v7, v7, v6, vcc",
         "v_mov_b32 v8, 4864","v_mov_b32 v9, 256","v_cndmask_b32 v8, v8, v9, vcc",
         f"v_mov_b32 v9, {KVREC}","v_mov_b32 v10, 128","v_cndmask_b32 v9, v9, v10, vcc"]
    epi_left=["s_barrier"]
    for u in range(2):
        a=ACC1+16*u
        epi_left+=[f"v_mul_f32 v{a+i}, v5, v{a+i}" for i in range(8)]+[f"v_cvt_pk_bf16_f32 v{208+4*u+j}, v{a+2*j}, v{a+2*j+1}" for j in range(4)]
        epi_left.append("v_mov_b32 v10, v7")
        for j in range(4):
            epi_left+=[("lg",f"ds_write_b32 v10, v{208+4*u+j}","KVS"),"v_add_u32 v10, v10, v8"]
        epi_left.append("v_add_u32 v7, v7, v9")
    addr_v=["s_sub_u32 s28, s3, 1","s_lshl_b32 s28, s28, 5","v_add_u32 v5, s28, v2",
         "v_mul_u32_u24 v6, 57, v5","v_lshrrev_b32 v6, 10, v6","v_mul_u32_u24 v7, 18, v6","v_sub_u32 v7, v5, v7",
         "v_subrev_u32 v8, 72, v5","v_lshrrev_b32 v9, 2, v8","v_add_u32 v9, 18, v9","v_and_b32 v8, 3, v8",
         "v_cmp_gt_u32 vcc, 72, v5","s_nop 1","v_cndmask_b32 v6, v8, v6, vcc","v_cndmask_b32 v7, v9, v7, vcc",
         "v_cmp_ne_u32 s[32:33], 18, v7",
         "v_mul_u32_u24 v6, 4864, v6","v_lshlrev_b32 v7, 4, v7","v_add_u32 v6, v6, v7","v_mul_u32_u24 v7, 320, v3","v_add_u32 v6, v6, v7","v_add_u32 v6, 1024, v6",
         "v_mov_b32 v8, 24576","v_cmp_gt_u32 vcc, 80, v5","s_nop 1","v_cndmask_b32 v6, v8, v6, vcc",
         "v_mov_b32 v9, 0x3f803f80"]
    epi_v=["s_barrier"]
    for u in range(2):
        a=ACC1+16*u; p=208+8*u
        epi_v+=[f"v_cvt_pk_bf16_f32 v{p+j}, v{a+2*j}, v{a+2*j+1}" for j in range(8)]
        epi_v+=[f"v_cndmask_b32 v{p+j}, v9, v{p+j}, s[32:33]" for j in range(8)]
        epi_v+=[("lg",f"ds_write_b128 v6, v[{p}:{p+3}] offset:{u*KVREC}","KVS"),("lg",f"ds_write_b128 v6, v[{p+4}:{p+7}] offset:{u*KVREC+640}","KVS")]
    RD=224
    tail=[("lgwait","KVS"),"s_barrier","s_mul_i32 s28, s3, 4864","v_add_u32 v12, s28, v1","s_lshl_b32 s28, s3, 8",f"s_add_u32 s28, s28, {QS}","v_add_u32 v13, s28, v1"]
    for u in range(2):
        tail+=[("lg",f"ds_read_b128 v[{RD+8*u}:{RD+8*u+3}], v12 offset:{1024+u*KVREC}","RD"),("lg",f"ds_read_b128 v[{RD+8*u+4}:{RD+8*u+7}], v12 offset:{2048+u*KVREC}","RD")]
    tail+=[("lg",f"ds_read_b128 v[{RD+16}:{RD+19}], v13","RD"),
           "v_mov_b32 v14, 0x7f000000","v_cmp_gt_u32 vcc, 24, v0","s_lshl_b32 s29, s22, 13","s_lshl_b32 s30, s23, 7","v_cndmask_b32 v15, v14, v1, vcc","s_add_u32 s29, s29, s30",f"s_add_u32 s29, s29, {CUR+L_Q2}",
           "v_cmp_gt_u32 vcc, 16, v0","s_add_u32 s30, s25, 2048",f"s_add_u32 s31, s25, {2048+KVREC}","v_cndmask_b32 v14, v14, v1, vcc",("lgwait","RD"),
           ("vm",f"buffer_store_dwordx4 v[{RD}:{RD+3}], v1, {LS}, s25 offen offset:1024 sc1",None),
           ("vm",f"buffer_store_dwordx4 v[{RD+4}:{RD+7}], v15, {LS}, s30 offen sc1",None),
           ("vm",f"buffer_store_dwordx4 v[{RD+8}:{RD+11}], v1, {LS}, s25 offen offset:{1024+KVREC} sc1",None),
           ("vm",f"buffer_store_dwordx4 v[{RD+12}:{RD+15}], v15, {LS}, s31 offen sc1",None),
           ("vm",f"buffer_store_dwordx4 v[{RD+16}:{RD+19}], v14, {LS}, s29 offen sc1",None)]
    epi_left+=tail; epi_v+=tail
    k.e(["s_cmp_lg_u32 s3, 0",f"s_cbranch_scc1 {LV}"])
    save=st.save()
    st.tile((ACC1,ACC1+16),list(range(36)),bjit=bj,la=LA,boost=1,hold=9,burst=8,at=at,fillers=addr_left,fill_start=40)
    k.stamp(3)
    st.tile((ACC0,ACC0+16),list(range(36)),fillers=epi_left,fill_start=5)
    k.e(f"s_branch {FIN}")
    k.label(LV)
    st.restore(save)
    st.tile((ACC1,ACC1+16),list(range(36)),bjit=bj,la=LA,boost=1,hold=9,burst=8,at=at,fillers=addr_v,fill_start=40,swap=True)
    k.stamp(3)
    st.tile((ACC0,ACC0+16),list(range(36)),fillers=epi_v,fill_start=5)
    k.label(FIN)
    k.stamp(4)
    k.e("s_nop 10")
    for u in range(2):
        a=ACC0+16*u; p=PK+8*u
        for j in range(4): k.e(f"v_cvt_pk_bf16_f32 v{p+4+j}, v{a+8+2*j}, v{a+8+2*j+1}")
        k.e(f"buffer_store_dwordx4 v[{p+4}:{p+7}], v1, {LS}, s25 offen offset:{u*KVREC} sc1")
    for u in range(2):
        a=ACC0+16*u; p=PK+8*u
        for i in range(8): k.e(f"v_mul_f32 v{a+i}, s27, v{a+i}")
        for j in range(4): k.e(f"v_cvt_pk_bf16_f32 v{p+j}, v{a+2*j}, v{a+2*j+1}")
        k.e(f"buffer_store_dwordx4 v[{p}:{p+3}], v1, {LS}, s24 offen offset:{u*1024} sc1")
    k.stamp(5); k.stamp_dump()
    k.label(END); k.e("s_endpgm")
    return k,256,256,73728
```

```python
from asmlib import *
from layout import *
import struct
def fbits(x): return "0x%08x"%struct.unpack("<I",struct.pack("<f",x))[0]

def ws_srd(k, d=8, ptr=(4,5)):
    k.e([f"s_mov_b32 s{d}, s{ptr[0]}", f"s_mov_b32 s{d+1}, s{ptr[1]}", f"s_mov_b32 s{d+2}, {hex(WS_SIZE)}", f"s_mov_b32 s{d+3}, 0x20000"])
def layer_srd(k, d=44, ptr=(4,5), off="s34"):
    k.e([f"s_add_u32 s{d}, s{ptr[0]}, {off}", f"s_addc_u32 s{d+1}, s{ptr[1]}, 0", f"s_mov_b32 s{d+2}, {hex(2*LSTRIDE)}", f"s_mov_b32 s{d+3}, 0x20000"])
def layer_aliases(k, base):
    k.aliases=[(f"{base}{l}_kernel",[f"s_mov_b32 s34, {hex(l*LSTRIDE)}"]) for l in range(2)]
def srd(k, d, ptr, size):
    k.e([f"s_mov_b32 s{d}, s{ptr[0]}", f"s_mov_b32 s{d+1}, s{ptr[1]}", f"s_mov_b32 s{d+2}, {hex(size)}", f"s_mov_b32 s{d+3}, 0x20000"])

def cross_half_add(k, v, t):
    k.e([f"v_mov_b32 v{t}, v{v}", "s_nop 1", f"v_permlane32_swap_b32 v{v}, v{t}", "s_nop 1", f"v_add_f32 v{v}, v{v}, v{t}"])

def ln_tile_task(k, layer_tag):
    pass

NWG0=64+64+32
import os
ROT='rot' in os.environ.get('X45','').split('_')
def gen_k0():
    k=Kern("k0_prep_kernel", nvgpr=128, nsgpr=64)
    END="k0_end"
    k.e([f"s_cmp_ge_u32 s2, {NWG0}", f"s_cbranch_scc1 {END}"])
    if 'noself' not in os.environ.get('X0',''):
        k.e(["s_getpc_b64 s[50:51]","v_lshrrev_b32 v100, 2, v0","v_lshlrev_b32 v100, 6, v100","global_load_dword v101, v100, s[50:51]","global_load_dword v102, v100, s[50:51] offset:4092"])
    if os.environ.get("OFFT"):
        k.nsgpr=100
        k.e(["s_cmp_lg_u32 s2, 0","s_cbranch_scc1 k0_nt","s_load_dwordx2 s[60:61], s[0:1], 56","s_memrealtime s[62:63]","s_waitcnt lgkmcnt(0)","s_add_u32 s60, s60, 5120","s_addc_u32 s61, s61, 0","v_mov_b32 v60, 0","v_mov_b32 v61, s62","global_store_dword v60, v61, s[60:61]","k0_nt:"])
    k.e(["s_load_dwordx2 s[4:5], s[0:1], 64",
         "s_load_dwordx2 s[12:13], s[0:1], 0",
         "s_load_dwordx2 s[16:17], s[0:1], 8",
         "v_lshrrev_b32 v1, 6, v0", "v_and_b32 v0, 63, v0", "s_nop 0", "v_readfirstlane_b32 s3, v1",
         ]); k.stamp(0)
    k.e("s_waitcnt lgkmcnt(0)"); k.stamp(1)
    ws_srd(k,8,(4,5))
    k.e(["v_lshlrev_b32 v1, 4, v0",
         "v_and_b32 v2, 31, v0",
         "v_lshrrev_b32 v3, 5, v0",
         "v_mov_b32 v4, 0x3f803f80"])
    k.e(["s_cmp_lt_u32 s2, 64","s_cbranch_scc1 k0_x",
         "s_cmp_lt_u32 s2, 128","s_cbranch_scc1 k0_qkv"])
    k.e(["s_cmp_lg_u32 s2, 128","s_cbranch_scc1 k0_nz","v_mov_b32 v40, 0","v_mov_b32 v41, 0","v_mov_b32 v42, 0","v_mov_b32 v43, 0"])
    for j in range(5):
        k.e([f"s_add_u32 s14, s3, {4*j}","s_min_u32 s14, s14, 17","s_lshl_b32 s14, s14, 10",f"s_add_u32 s14, s14, {WS_CS1}","buffer_store_dwordx4 v[40:43], v1, s[8:11], s14 offen"])
    k.label("k0_nz")
    k.e(["s_getpc_b64 s[50:51]"]); k.label("k0_pc")
    k.e(["s_add_u32 s50, s50, k1_qkv0_kernel-k0_pc","s_addc_u32 s51, s51, (k1_qkv0_kernel-k0_pc)>>32",
         "s_sub_u32 s52, s2, 128","s_lshr_b32 s52, s52, 3","s_lshl_b32 s52, s52, 2","s_add_u32 s52, s52, s3","s_lshl_b32 s52, s52, 10"])
    for j in range(4):
        k.e([f"s_add_u32 s53, s52, {j*16384}","s_min_u32 s53, s53, k6_red_codeend-k1_qkv0_kernel-1024","v_add_u32 v5, s53, v1",f"global_load_dwordx4 v[{8+4*j}:{11+4*j}], v5, s[50:51]"])
    k.e(f"s_branch {END}")
    k.label("k0_x")
    srd(k,36,(12,13),S*D*2)
    k.e(["s_lshl_b32 s14, s2, 5","v_add_u32 v5, s14, v2","s_movk_i32 s15, 1152","v_mul_lo_u32 v5, v5, s15","v_lshlrev_b32 v6, 3, v3","v_add_u32 v5, v5, v6",
         "s_lshl_b32 s18, s3, 5"])
    X=16
    for m in range(9):
        k.e(f"s_add_u32 s19, s18, {m*128}")
        k.e(f"buffer_load_dwordx2 v[{X+4*m}:{X+4*m+1}], v5, s[36:39], s19 offen")
        k.e(f"buffer_load_dwordx2 v[{X+4*m+2}:{X+4*m+3}], v5, s[36:39], s19 offen offset:16")
    k.e([f"s_mul_i32 s22, s2, {AFB}","s_lshl_b32 s23, s3, 10","s_add_u32 s22, s22, s23"])
    k.stamp(2)
    k.e(["s_waitcnt vmcnt(0)"]); k.stamp(3)
    k.e(["v_lshrrev_b32 v6, 4, v2","v_mul_u32_u24 v6, 18432, v6","v_and_b32 v7, 15, v2","v_lshlrev_b32 v8, 4, v3","v_add_u32 v7, v7, v8","v_lshlrev_b32 v7, 4, v7","v_add_u32 v6, v6, v7",
         f"s_mul_i32 s26, s2, {AFB}","s_lshr_b32 s27, s3, 1","s_lshl_b32 s27, s27, 10","s_add_u32 s26, s26, s27","s_and_b32 s27, s3, 1","s_lshl_b32 s27, s27, 3","s_add_u32 s26, s26, s27",f"s_add_u32 s26, s26, {WS_X0}"])
    k.e(["v_mov_b32 v7, 0","v_mov_b32 v8, 0"])
    for m in range(9):
        for j in range(4): k.e([f"v_dot2c_f32_bf16 v7, v{X+4*m+j}, v4",f"v_dot2c_f32_bf16 v8, v{X+4*m+j}, v{X+4*m+j}"])
    k.e("s_nop 2")
    cross_half_add(k,7,9); cross_half_add(k,8,9)
    k.e(["v_lshlrev_b32 v9, 3, v2","s_lshl_b32 s23, s3, 8","v_add_u32 v10, s23, v9","v_mov_b32 v12, v7","v_mov_b32 v13, v8","ds_write_b64 v10, v[12:13]"])
    for m in range(9):
        k.e(f"buffer_store_dwordx2 v[{X+4*m}:{X+4*m+1}], v6, s[8:11], s26 offen")
        k.e(f"buffer_store_dwordx2 v[{X+4*m+2}:{X+4*m+3}], v6, s[8:11], s26 offen offset:512")
        k.e("s_add_u32 s26, s26, 2048")
    k.e(["s_waitcnt lgkmcnt(0)","s_barrier",
         "ds_read_b64 v[12:13], v9","ds_read_b64 v[14:15], v9 offset:256","ds_read_b64 v[124:125], v9 offset:512","ds_read_b64 v[126:127], v9 offset:768","s_waitcnt lgkmcnt(0)",
         "v_add_f32 v12, v12, v14","v_add_f32 v13, v13, v15","v_add_f32 v124, v124, v126","v_add_f32 v125, v125, v127","v_add_f32 v12, v12, v124","v_add_f32 v13, v13, v125",
         f"v_mul_f32 v11, {fbits(1.0/576)}, v12",
         f"v_mul_f32 v13, {fbits(1.0/576)}, v13","v_fma_f32 v13, -v11, v11, v13","v_max_f32 v13, 0, v13",f"v_add_f32 v13, {fbits(1e-5)}, v13","v_rsq_f32 v13, v13"])
    k.stamp(4)
    Y=52
    for i in range(36):
        k.e([f"v_lshlrev_b32 v{Y+2*i}, 16, v{X+i}", f"v_and_b32 v{Y+2*i+1}, 0xffff0000, v{X+i}",
             f"v_sub_f32 v{Y+2*i}, v{Y+2*i}, v11", f"v_sub_f32 v{Y+2*i+1}, v{Y+2*i+1}, v11"])
    k.stamp(5)
    for i in range(36):
        k.e([f"v_mul_f32 v{Y+2*i}, v{Y+2*i}, v13", f"v_mul_f32 v{Y+2*i+1}, v{Y+2*i+1}, v13", f"v_cvt_pk_bf16_f32 v{X+i}, v{Y+2*i}, v{Y+2*i+1}"])
    for m in range(9):
        k.e(f"s_add_u32 s19, s22, {WS_XN0+m*4096}")
        k.e(f"buffer_store_dwordx4 v[{X+4*m}:{X+4*m+3}], v1, s[8:11], s19 offen")
    k.e(f"s_branch {END}")
    k.label("k0_qkv")
    srd(k,36,(16,17),D*3*D*2)
    k.e(["s_sub_u32 s14, s2, 64","s_lshr_b32 s15, s14, 3","s_and_b32 s14, s14, 7",
         "s_mul_i32 s30, s3, 9216",
         "v_lshrrev_b32 v5, 2, v0","v_and_b32 v6, 3, v0",
         "s_lshl_b32 s18, s15, 2"])
    k.e(["s_add_u32 s19, s18, s14","s_mul_i32 s19, s19, 18","v_lshlrev_b32 v10, 3, v6","v_add_u32 v10, s19, v10","v_add_u32 v11, 560, v10","v_cmp_gt_u32 vcc, 2, v6","s_nop 1","v_cndmask_b32 v10, v11, v10, vcc",
         "s_sub_u32 s19, s14, 5","s_lshl_b32 s19, s19, 5","v_lshlrev_b32 v12, 3, v6","v_add_u32 v12, s19, v12","s_mul_i32 s22, s15, 72","s_add_u32 s22, s22, 1152","v_add_u32 v13, s22, v12",
         "v_mov_b32 v16, 0x20000000","v_cmp_gt_u32 vcc, 72, v12","s_nop 1","v_cndmask_b32 v13, v16, v13, vcc",
         "s_cmp_lt_u32 s14, 4","s_cselect_b64 vcc, -1, 0","v_cndmask_b32 v10, v13, v10, vcc","v_lshlrev_b32 v10, 1, v10",
         "v_mul_u32_u24 v11, 3456, v5","v_add_u32 v10, v10, v11",
         "v_and_b32 v12, 15, v0","v_lshrrev_b32 v13, 1, v12","v_and_b32 v13, 1, v13","v_mul_u32_u24 v13, 576, v13","v_and_b32 v14, 1, v12","v_lshrrev_b32 v15, 2, v12","v_lshlrev_b32 v15, 1, v15","v_add_u32 v14, v14, v15",
         "v_add_u32 v14, s18, v14","v_mul_u32_u24 v14, 18, v14","v_add_u32 v13, v13, v14","v_add_u32 v13, 16, v13","v_cmp_gt_u32 vcc, 8, v12","s_nop 1","v_cndmask_b32 v13, v16, v13, vcc","v_lshlrev_b32 v13, 1, v13",
         "v_lshrrev_b32 v14, 4, v0","v_mul_u32_u24 v14, 3456, v14","v_add_u32 v13, v13, v14",
         "s_mul_i32 s18, s3, %d"%(16*3456),"s_mov_b32 s23, 9","s_mov_b32 s26, s30","s_cmp_eq_u32 s14, 4","s_cbranch_scc1 k0_qkv4"])
    k.label("k0_qkvl")
    k.e(["s_mov_b32 m0, s26","s_add_u32 s26, s26, 1024","buffer_load_dwordx4 v10, s[36:39], s18 offen lds","s_add_u32 s18, s18, %d"%(64*3456),"s_sub_u32 s23, s23, 1","s_cmp_lg_u32 s23, 0","s_cbranch_scc1 k0_qkvl","s_branch k0_qkvp"])
    k.label("k0_qkv4")
    for q in range(4):
        k.e([f"s_add_u32 m0, s26, {q*256}",f"s_add_u32 s19, s18, {q*4*3456}","buffer_load_dword v13, s[36:39], s19 offen lds"])
    k.e(["s_add_u32 s26, s26, 1024","s_add_u32 s18, s18, %d"%(64*3456),"s_sub_u32 s23, s23, 1","s_cmp_lg_u32 s23, 0","s_cbranch_scc1 k0_qkv4"])
    k.label("k0_qkvp")
    k.e(["v_lshrrev_b32 v8, 2, v0","v_and_b32 v8, 3, v8","v_lshlrev_b32 v9, 2, v3","v_add_u32 v8, v8, v9","v_lshlrev_b32 v8, 6, v8",
         "v_lshrrev_b32 v9, 4, v0","v_and_b32 v9, 1, v9","v_lshlrev_b32 v9, 5, v9","v_add_u32 v8, v8, v9","v_and_b32 v9, 3, v0","v_lshlrev_b32 v9, 3, v9","v_add_u32 v8, v8, v9","v_add_u32 v7, s30, v8",
         "s_lshl_b32 s22, s15, 2","s_and_b32 s23, s14, 3","s_add_u32 s22, s22, s23",f"s_mul_i32 s22, s22, {WQKV_WAVE}",
         "s_lshr_b32 s23, s14, 2","s_xor_b32 s23, s23, 1","s_mul_i32 s23, s23, 36","s_add_u32 s23, s23, s3","s_lshl_b32 s23, s23, 10","s_add_u32 s22, s22, s23",f"s_add_u32 s22, s22, {WS_WQKV}",
         "s_mov_b32 s23, 9","s_waitcnt vmcnt(0)"])
    k.label("k0_qkvs")
    k.e(["ds_read_b64_tr_b16 v[16:17], v7","ds_read_b64_tr_b16 v[18:19], v7 offset:512","v_add_u32 v7, 1024, v7","s_waitcnt lgkmcnt(0)",
         "buffer_store_dwordx4 v[16:19], v1, s[8:11], s22 offen","s_add_u32 s22, s22, 4096","s_sub_u32 s23, s23, 1","s_cmp_lg_u32 s23, 0","s_nop 1","s_cbranch_scc1 k0_qkvs"])
    k.label(END)
    if Kern.STAMPS:
        k.stamp(6); k.e("s_waitcnt vmcnt(0)"); k.stamp(7); k.stamp_dump(int(os.environ.get("K0WG","0")))
    k.e("s_endpgm")
    return k, NWG0, 256, 40960
```

```python
from asmlib import *
from layout import *
from k0 import fbits, ws_srd, layer_srd, layer_aliases
import wconv, os
LS="s[44:47]"
Q1=8; Q2=12; K1=16; K2=20; V0=24; V1=28; S=(32,48); P=64; O=72
AK1=4; AK2=5; AV=6
def mf16(d,a,b,c): return f"v_mfma_f32_32x32x16_bf16 v[{d}:{d+15}], v[{a}:{a+3}], v[{b}:{b+3}], {c}"
def mf8(d,a,b,c): return f"v_mfma_f32_32x32x8_bf16 v[{d}:{d+15}], v[{a}:{a+1}], v[{b}:{b+1}], {c}"
def acc(d): return f"v[{d}:{d+15}]"
def tile_body(t):
    c=S[t&1]; n=S[(t+1)&1]
    ex=lambda i: f"v_exp_f32 v{c+i}, v{c+i}"
    cv=lambda j: f"v_cvt_pk_bf16_f32 v{P+j}, v{c+2*j}, v{c+2*j+1}"
    o=[]
    o+=[ex(0),ex(1), mf16(O,V1,P+4,acc(O)),
        f"ds_read_b128 v[{V0}:{V0+3}], v{AV} offset:{t*KVREC}", f"ds_read_b128 v[{V1}:{V1+3}], v{AV} offset:{t*KVREC+640}",
        ex(2),ex(3),cv(0),"s_waitcnt lgkmcnt(2)", mf16(n,K1,Q1,"0"),
        ex(4),ex(5),cv(1),ex(6),ex(7), mf8(n,K2,Q2,acc(n)),
        f"ds_read_b128 v[{K1}:{K1+3}], v{AK1} offset:{(t+2)*KVREC}", f"ds_read_b32 v{K2}, v{AK2} offset:{(t+2)*KVREC}",
        cv(2),ex(8),cv(3),ex(9),ex(10),"s_waitcnt lgkmcnt(2)", mf16(O,V0,P,acc(O)),
        ex(11),cv(4),ex(12),ex(13),cv(5),ex(14),ex(15),cv(6),cv(7)]
    X=os.environ.get('X2','')
    if 'nolds' in X: o=[x for x in o if not x.startswith(('ds_read','s_waitcnt'))]
    if 'nowait' in X: o=[x for x in o if not x.startswith('s_waitcnt')]
    if 'nomfma' in X: o=[x for x in o if not x.startswith('v_mfma')]
    if 'nok2' in X: o=[x for x in o if not x.startswith('ds_read_b32')]
    return o
def gen_k2():
    k=Kern("k2_attn", nvgpr=128, nsgpr=64); layer_aliases(k,"k2_attn")
    B=CUR; END=k.name+"_end"
    k.e([f"s_cmp_ge_u32 s2, 256", f"s_cbranch_scc1 {END}",
         "s_load_dwordx2 s[4:5], s[0:1], 64"]); k.stamp(0)
    k.e(["v_lshrrev_b32 v1, 6, v0","v_and_b32 v0, 63, v0","s_nop 0","v_readfirstlane_b32 s3, v1",
         "v_lshlrev_b32 v1, 4, v0","v_and_b32 v2, 31, v0","v_lshrrev_b32 v3, 5, v0",
         "s_and_b32 s12, s2, 7","s_lshl_b32 s12, s12, 2","s_lshr_b32 s13, s2, 3","s_and_b32 s13, s13, 3","s_add_u32 s12, s12, s13",
         "s_lshr_b32 s13, s2, 5","s_lshl_b32 s13, s13, 3","s_add_u32 s13, s13, s3",
         "s_lshl_b32 s14, s12, 16","s_lshl_b32 s15, s13, 10","s_add_u32 s14, s14, s15",f"s_add_u32 s14, s14, {B+L_Q1}",
         "s_lshl_b32 s15, s12, 13","s_lshl_b32 s16, s13, 7","s_add_u32 s15, s15, s16",f"s_add_u32 s15, s15, {B+L_Q2}",
         "v_lshlrev_b32 v7, 2, v2","v_mov_b32 v93, 0x7f000000","v_cmp_gt_u32 vcc, 32, v0",
         f"s_mul_i32 s16, s12, {KV_HEAD}","s_lshl_b32 s17, s3, 10","s_add_u32 s16, s16, s17",f"s_add_u32 s16, s16, {B+L_KV}",
         "v_cndmask_b32 v93, v93, v7, vcc",
         "s_waitcnt lgkmcnt(0)"])
    k.stamp(1)
    layer_srd(k); ws_srd(k,8,(4,5))
    HELP=k.name+"_help"
    k.e(["s_cmp_ge_u32 s3, 8",f"s_cbranch_scc1 {HELP}"])
    k.e([f"buffer_load_dwordx4 v[{Q1}:{Q1+3}], v1, {LS}, s14 offen", f"buffer_load_dword v{Q2}, v93, {LS}, s15 offen"])
    def dma(n):
        if n<13: return [f"s_add_u32 m0, s17, {n*8192}", f"s_add_u32 s18, s16, {n*8192}", f"buffer_load_dwordx4 v1, {LS}, s18 offen lds"]
        return [f"s_add_u32 s18, s3, {8*n}","s_min_u32 s18, s18, 109","s_lshl_b32 s18, s18, 10","s_mov_b32 m0, s18","s_add_u32 s18, s18, s19", f"buffer_load_dwordx4 v1, {LS}, s18 offen lds"]
    k.e("s_sub_u32 s19, s16, s17")
    for n in range(3): k.e(dma(n))
    k.e([f"v_mov_b32 v{AK1}, v1", f"v_add_u32 v{AK2}, 2304, v7", "v_mul_u32_u24 v94, 320, v3","v_min_u32 v95, 19, v2","v_lshlrev_b32 v95, 4, v95","v_add_u32 v94, v94, v95",f"v_add_u32 v{AV}, 1024, v94",
         f"v_mov_b32 v{Q2+1}, 0", f"v_mov_b32 v{K2+1}, 0"])
    for i in range(16): k.e(f"v_mov_b32 v{O+i}, 0")
    for i in range(4): k.e([f"v_mov_b32 v{P+4+i}, 0", f"v_mov_b32 v{V1+i}, 0"])
    k.e(["s_waitcnt vmcnt(0)","s_barrier"]); k.stamp(2)
    k.e([f"ds_read_b128 v[{K1}:{K1+3}], v{AK1}", f"ds_read_b32 v{K2}, v{AK2}", "s_waitcnt lgkmcnt(0)",
         mf16(S[0],K1,Q1,"0"), mf8(S[0],K2,Q2,acc(S[0])),
         f"ds_read_b128 v[{K1}:{K1+3}], v{AK1} offset:{KVREC}", f"ds_read_b32 v{K2}, v{AK2} offset:{KVREC}",
         "s_nop 10"])
    LOOP=k.name+"_loop"
    for t in range(8):
        b=tile_body(t)
        if t<4:
            ex=[]
            for n in range(3+3*t,min(6+3*t,14)): ex+=dma(n)
            b=b[:5]+ex[:6]+b[5:17]+ex[6:]+b[17:]
        k.e(b)
    adv=[f"v_add_u32 v{AK1}, {8*KVREC}, v{AK1}", f"v_add_u32 v{AK2}, {8*KVREC}, v{AK2}", f"v_add_u32 v{AV}, {8*KVREC}, v{AV}"]
    k.e(adv+["s_waitcnt vmcnt(0)","s_barrier","s_mov_b32 s20, 1"]); k.stamp(3)
    body=[]
    for t in range(8): body+=tile_body(t)
    if 'blk' in os.environ.get('X2',''):
        for b in range(1,8):
            k.e(body); k.e(adv)
            if b in (3,4): k.e("s_barrier")
            if b in (1,2,3,4,5,6): k.stamp(4+b)
        k.e("s_branch "+k.name+"_after")
    k.e(".p2align 6")
    k.label(LOOP)
    if 'prio' in os.environ.get('X2','').split('_'):
        PA=k.newlabel("pa"); PB=k.newlabel("pb")
        k.e(["s_lshr_b32 s23, s3, 2","s_xor_b32 s23, s23, s20","s_and_b32 s23, s23, 1",f"s_cbranch_scc1 {PA}","s_setprio 0",f"s_branch {PB}"])
        k.label(PA); k.e("s_setprio 1"); k.label(PB)
    k.e(body)
    NOB=k.newlabel("nob")
    k.e(adv+["s_sub_u32 s21, s20, 3","s_cmp_lt_u32 s21, 2",f"s_cbranch_scc0 {NOB}","s_barrier"]); k.label(NOB)
    k.e(["s_add_u32 s20, s20, 1","s_cmp_lt_u32 s20, 8",f"s_cbranch_scc1 {LOOP}"])
    k.label(k.name+"_after")
    k.e(["s_setprio 0", mf16(O,V1,P+4,acc(O))]); k.stamp(4)
    k.e(["s_waitcnt lgkmcnt(0)","s_nop 10"])
    CHK=k.name+"_chk"; FIN=k.name+"_fin"; SLOW=k.name+"_slow"
    def lbcast():
        k.e([f"v_mov_b32 v32, v{O+10}", f"v_mov_b32 v33, v{O+10}", "s_nop 1", "v_permlane32_swap_b32 v32, v33", "s_nop 1"])
    lbcast()
    k.e([f"v_mov_b32 v34, {fbits(2.0**-64)}", f"v_mov_b32 v35, {fbits(2.0**64)}", f"v_mov_b32 v36, {fbits(2.0**126)}",
         "v_cmp_ge_f32 s[22:23], v32, v34","v_cmp_le_f32 s[24:25], v32, v35","s_nop 1","s_and_b64 s[22:23], s[22:23], s[24:25]"])
    for i in range(8):
        k.e([f"v_cmp_lt_f32 s[24:25], |v{O+i}|, v36","s_nop 1","s_and_b64 s[22:23], s[22:23], s[24:25]"])
    k.e(["v_cmp_lt_u32 s[26:27], 31, v0"])
    for i in (8,9):
        k.e([f"v_cmp_lt_f32 s[24:25], |v{O+i}|, v36","s_nop 1","s_or_b64 s[24:25], s[24:25], s[26:27]","s_and_b64 s[22:23], s[22:23], s[24:25]"])
    k.e(["s_cmp_eq_u64 s[22:23], -1", f"s_cbranch_scc0 {SLOW}"])
    k.label(FIN)
    k.e(["v_rcp_f32 v33, v32","s_nop 0"])
    for i in range(10): k.e(f"v_mul_f32 v{O+i}, v{O+i}, v33")
    for j in range(5): k.e(f"v_cvt_pk_bf16_f32 v{40+j}, v{O+2*j}, v{O+2*j+1}")
    k.e([f"s_mul_i32 s14, s13, {AFB}","s_lshl_b32 s15, s12, 10","s_add_u32 s15, s15, s14",f"s_add_u32 s15, s15, {B+L_O}",
         "buffer_store_dwordx4 v[40:43], v1, s[44:47], s15 offen",
         "s_lshr_b32 s16, s12, 3","s_add_u32 s16, s16, 32","s_lshl_b32 s16, s16, 10","s_add_u32 s16, s16, s14",
         "s_lshr_b32 s17, s12, 2","s_and_b32 s17, s17, 1","s_lshl_b32 s17, s17, 9","s_add_u32 s16, s16, s17",
         "s_and_b32 s17, s12, 3","s_lshl_b32 s17, s17, 2","s_add_u32 s16, s16, s17",f"s_add_u32 s16, s16, {B+L_O}",
         "v_lshlrev_b32 v7, 4, v2","v_mov_b32 v93, 0x7f000000","v_cmp_gt_u32 vcc, 32, v0","s_nop 1","v_cndmask_b32 v93, v93, v7, vcc",
         "buffer_store_dword v44, v93, s[44:47], s16 offen"])
    (k.stamp(5) if 'blk' not in os.environ.get('X2','') else None); k.stamp_dump()
    k.e(f"s_branch {END}")
    k.label(SLOW)
    k.e([f"v_mov_b32 v{AK1}, v1","v_lshlrev_b32 v7, 2, v2",f"v_add_u32 v{AK2}, 2304, v7", "v_mul_u32_u24 v94, 320, v3","v_min_u32 v95, 19, v2","v_lshlrev_b32 v95, 4, v95","v_add_u32 v94, v94, v95",f"v_add_u32 v{AV}, 1024, v94",
         "v_mov_b32 v90, 0xff7fffff","s_mov_b32 s20, 0"])
    for i in range(16): k.e(f"v_mov_b32 v{O+i}, 0")
    SL=k.name+"_sl"
    k.label(SL)
    c=S[0]
    k.e([f"ds_read_b128 v[{K1}:{K1+3}], v{AK1}", f"ds_read_b32 v{K2}, v{AK2}", f"ds_read_b128 v[{V0}:{V0+3}], v{AV}", f"ds_read_b128 v[{V1}:{V1+3}], v{AV} offset:640",
         "s_waitcnt lgkmcnt(0)", mf16(c,K1,Q1,"0"), mf8(c,K2,Q2,acc(c)), "s_nop 11"])
    k.e(f"v_max_f32 v91, v{c}, v{c+1}")
    for i in range(2,16,2): k.e(f"v_max3_f32 v91, v91, v{c+i}, v{c+i+1}")
    k.e(["v_mov_b32 v92, v91","s_nop 1","v_permlane32_swap_b32 v91, v92","s_nop 1","v_max3_f32 v91, v91, v92, v90",
         "v_sub_f32 v92, v90, v91","v_exp_f32 v92, v92","v_mov_b32 v90, v91","s_nop 0"])
    for i in range(16): k.e(f"v_mul_f32 v{O+i}, v{O+i}, v92")
    for i in range(16): k.e(f"v_sub_f32 v{c+i}, v{c+i}, v91")
    for i in range(16): k.e(f"v_exp_f32 v{c+i}, v{c+i}")
    k.e("s_nop 0")
    for j in range(8): k.e(f"v_cvt_pk_bf16_f32 v{P+j}, v{c+2*j}, v{c+2*j+1}")
    k.e(["s_nop 1", mf16(O,V0,P,acc(O)), mf16(O,V1,P+4,acc(O)),
         f"v_add_u32 v{AK1}, {KVREC}, v{AK1}", f"v_add_u32 v{AK2}, {KVREC}, v{AK2}", f"v_add_u32 v{AV}, {KVREC}, v{AV}",
         "s_nop 9","s_add_u32 s20, s20, 1","s_cmp_lt_u32 s20, 64",f"s_cbranch_scc1 {SL}","s_nop 4"])
    lbcast()
    k.e(f"s_branch {FIN}")
    k.e(f"s_branch {END}")
    k.label(HELP)
    H1=k.name+"_h1"; H2=k.name+"_h2"
    k.e(["s_sub_u32 s36, s3, 8","s_sub_u32 s37, s16, s17",
         "s_add_u32 s38, s36, 110"])
    def kv2():
        for n in range(11):
            k.e([f"s_add_u32 s18, s38, {4*n}","s_min_u32 s18, s18, 151","s_lshl_b32 s18, s18, 10","s_mov_b32 m0, s18","s_add_u32 s18, s18, s37",f"buffer_load_dwordx4 v1, {LS}, s18 offen lds"])
    k.e(["s_cmp_eq_u32 s34, 0",f"s_cbranch_scc0 {H1}"])
    def hb(i):
        if i==-1: k.e(["s_barrier","s_barrier"])
        else: k.stamp(2); k.e(["s_barrier"])
    wconv.emit(k,112640,hb)
    kv2()
    k.e(f"s_branch {H2}")
    k.label(H1)
    k.e(["s_barrier","s_barrier"])
    kv2()
    k.e(["s_barrier"])
    k.label(H2)
    k.stamp(3)
    k.e(["s_waitcnt vmcnt(0)"]); k.stamp(4); k.e("s_barrier"); k.stamp(5)
    if 'nowopf' not in os.environ.get('X2',''):
        k.e(["s_lshr_b32 s18, s2, 3","s_lshl_b32 s18, s18, 2","s_add_u32 s18, s18, s36"])
        for j in range(6):
            k.e([f"s_add_u32 s19, s18, {128*j}","s_min_u32 s19, s19, 647","s_lshl_b32 s19, s19, 10",f"s_add_u32 s19, s19, {WS_WO}",f"buffer_load_dwordx4 v[{104+4*(j%4)}:{107+4*(j%4)}], v1, s[8:11], s19 offen"])
    k.code_prefetch("k3_wo0_kernel","k6_red_codeend",4,96,wave="s36")
    if Kern.STAMPS:
        LL=k.newlabel("hs"); k.e(["s_cmp_lg_u32 s3, 8",f"s_cbranch_scc1 {LL}"]); k.stamp_dump(); k.label(LL)
    k.label(END); k.e("s_endpgm")
    p=check_hazards(body+body,k.name+"(loop)")
    for x in p: print("HAZARD",x)
    return k,256,768,163840
```

```python
from asmlib import *
from layout import *
from gemm import *
from k0 import fbits, ws_srd, layer_srd, layer_aliases
import os
LS="s[44:47]"
HO=73728; XO=147456; T16=18432
X=os.environ.get('X45','')
NB=int(os.environ.get('NB45','2')); LB2=NB.bit_length()-1
BX=4
BH=8
HW=12
NM=16; C1=20; RS=24
CSA=28; CS=32
TMP=40
PK=56
AX=72; AY=88
RING=104; R=22
BT=192
ONE=30
LOG2E=1.4426950408889634
class S16(Stream):
    NU=4; ACCW=4; MF="v_mfma_f32_16x16x32_bf16"
def gen_k45():
    k=Kern("k45_mlp", nvgpr=256, nagpr=256, nsgpr=64); layer_aliases(k,"k45_mlp")
    B=CUR; END=k.name+"_end"
    k.e([f"s_cmp_ge_u32 s2, 256", f"s_cbranch_scc1 {END}",
         "s_load_dwordx2 s[4:5], s[0:1], 64"]); k.stamp(0)
    k.e(["v_lshrrev_b32 v1, 6, v0","v_and_b32 v0, 63, v0","s_nop 0","v_readfirstlane_b32 s3, v1",
         "v_lshlrev_b32 v1, 4, v0","v_lshrrev_b32 v3, 4, v0",
         "s_lshr_b32 s16, s2, 3",f"s_and_b32 s13, s2, {8//NB-1}",f"s_lshl_b32 s13, s13, {LB2}",f"s_and_b32 s17, s16, {NB-1}","s_add_u32 s13, s13, s17",
         "s_and_b32 s12, s2, 7",f"s_lshr_b32 s12, s12, {3-LB2}",f"s_lshl_b32 s12, s12, {5-LB2}",f"s_lshr_b32 s16, s16, {LB2}","s_add_u32 s12, s12, s16",
         f"s_mul_i32 s19, s3, {T16}",
         f"s_mul_i32 s18, s12, {4*T16}",f"s_add_u32 s18, s18, {B+L_X1}","s_add_u32 s18, s18, s19",
         "s_lshl_b32 s20, s13, 2","s_add_u32 s20, s20, s3",f"s_mul_i32 s20, s20, {W12_WAVE}",f"s_add_u32 s20, s20, {WS_W12}",
         "s_waitcnt lgkmcnt(0)"]); k.stamp(1)
    layer_srd(k); ws_srd(k,8,(4,5))
    if 'probe' in X:
        k.stamp(5); k.e(["s_add_u32 s21, s20, 102400","buffer_load_dwordx4 v[104:107], v1, s[8:11], s21 offen","s_waitcnt vmcnt(0)"]); k.stamp(6)
        k.e(["s_add_u32 s21, s20, 256000","buffer_load_dwordx4 v[104:107], v1, s[8:11], s21 offen","s_waitcnt vmcnt(0)"]); k.stamp(7)
        k.e([f"buffer_load_dwordx4 v[104:107], v1, {LS}, s18 offen","s_waitcnt vmcnt(0)"]); k.stamp(8)
    st=S16(k,RING,R,324,btail=BT)
    ROT='rot' in X.split('_')
    k.e(["s_and_b32 s17, s13, 1" if ROT else "s_mov_b32 s17, 0","s_mul_i32 s17, s17, 9216","s_add_u32 s14, s18, s17","s_sub_u32 s15, s18, s17"])
    def xd(i): return [f"s_add_u32 m0, s19, {i*1024}", f"s_add_u32 s21, {'s14' if i<9 else 's15'}, {i*1024}", ("vm",f"buffer_load_dwordx4 v1, {LS}, s21 offen lds",("X",i))]
    for i in range(6):
        for it in xd(i): st.place(it)
    st.prefetch(6)
    for i in range(6,18):
        for it in xd(i): st.place(it)
    st.prefetch(int(os.environ.get('PF2','0')))
    STL=XO+4096
    k.e(["s_lshl_b32 s16, s12, 1",f"s_mul_i32 s16, s16, {ST_TT}",f"s_add_u32 s16, s16, {B+L_ST}"])
    for j in range(3):
        k.e([f"s_add_u32 s17, s3, {4*j}","s_min_u32 s17, s17, 8","s_lshl_b32 s17, s17, 10",f"s_add_u32 m0, s17, {STL}","s_add_u32 s21, s16, s17"])
        k.vm_op(f"buffer_load_dwordx4 v1, {LS}, s21 offen lds","CSD")
    k.e([f"s_mul_i32 s22, s13, 2304",f"s_add_u32 s22, s22, {WS_CS1}","s_lshl_b32 s23, s3, 10","s_add_u32 s22, s22, s23",f"s_add_u32 m0, s23, {XO}","s_nop 0"])
    k.vm_op("buffer_load_dwordx4 v1, s[8:11], s22 offen lds","CSD")
    STR=lambda r: (88+r if r<16 else 40+r-16)
    k.e(["v_lshrrev_b32 v2, 5, v0",f"v_mul_u32_u24 v2, {ST_TT}, v2","v_and_b32 v60, 31, v0","v_lshlrev_b32 v60, 4, v60","v_add_u32 v2, v2, v60",f"v_add_u32 v2, {STL}, v2"])
    for u in range(4):
        k.e([f"v_add_u32 v{BX+u}, {u*T16}, v1", f"v_add_u32 v{BH+u}, {HO+u*T16}, v1"])
    k.e(["s_lshr_b32 s21, s3, 1","s_lshl_b32 s21, s21, 10","s_and_b32 s17, s3, 1","s_lshl_b32 s17, s17, 3","s_add_u32 s21, s21, s17"])
    for u in range(4): k.e(f"v_add_u32 v{HW+u}, s21, v{BH+u}")
    k.e([f"v_lshlrev_b32 v{CSA}, 4, v3","s_lshl_b32 s21, s3, 6",f"s_add_u32 s21, s21, {XO}",f"v_add_u32 v{CSA}, s21, v{CSA}"])
    k.e([f"s_mul_i32 s26, s12, {4*T16}",f"s_mul_i32 s21, s13, {AF_SIZE}","s_add_u32 s26, s26, s21",f"s_add_u32 s26, s26, {B+L_PART}",
         "s_lshl_b32 s21, s3, 10","s_add_u32 s28, s26, s21",
         "s_lshr_b32 s21, s3, 1","s_add_u32 s21, s21, 16","s_lshl_b32 s21, s21, 10","s_and_b32 s17, s3, 1","s_lshl_b32 s17, s17, 3","s_add_u32 s21, s21, s17","s_add_u32 s30, s26, s21"])
    k.e([f"v_mov_b32 v{ONE}, 1.0",f"v_mov_b32 v{ONE+1}, 1.0"])
    sf=[("lg",f"ds_read_b128 v[{STR(4*j)}:{STR(4*j)+3}], v2 offset:{512*j}","ST") for j in range(9)]+[("lgwait","ST"),f"v_add_f32 v60, v{STR(0)}, v{STR(2)}",f"v_add_f32 v62, v{STR(1)}, v{STR(3)}"]
    sf+=[f"v_mul_f32 v61, v{STR(0)}, v{STR(0)}",f"v_fmac_f32 v61, v{STR(2)}, v{STR(2)}"]
    for b in range(2,18): sf+=[f"v_add_f32 v60, v60, v{STR(2*b)}",f"v_add_f32 v62, v62, v{STR(2*b+1)}",f"v_fmac_f32 v61, v{STR(2*b)}, v{STR(2*b)}"]
    sf+=[f"v_fmac_f32 v62, {fbits(1.0/32)}, v61",f"v_mul_f32 v61, {fbits(1.0/576)}, v60","v_fma_f32 v62, -v60, v61, v62","v_max_f32 v62, 0, v62","v_mov_b32 v60, v61"]
    sf+=[f"v_mov_b32 v63, {fbits(1e-5)}",f"v_fmac_f32 v63, {fbits(1.0/576)}, v62",f"v_rsq_f32 v{RS}, v63",f"v_sub_f32 v{NM}, 0, v60"]
    def bc4(r):
        return [f"v_mov_b32 v{r+2}, v{r}","s_nop 1",f"v_permlane32_swap_b32 v{r}, v{r+2}",f"v_mov_b32 v{r+1}, v{r}",f"v_mov_b32 v{r+3}, v{r+2}","s_nop 1",
                f"v_permlane16_swap_b32 v{r}, v{r+1}",f"v_permlane16_swap_b32 v{r+2}, v{r+3}"]
    sf+=["s_nop 0"]+bc4(NM)+bc4(RS)+["s_nop 1"]+[f"v_mul_f32 v{C1+u}, {fbits(-LOG2E)}, v{RS+u}" for u in range(4)]
    k.stamp(2)
    k.vm_wait(("X",5)); k.e("s_barrier"); k.stamp(3)
    def bjX(u,kap): return f"ds_read_b128 {st.breg(u,kap)}, v{BX+u} offset:{kap*1024}"
    def bjH(u,kap): return f"ds_read_b128 {st.breg(u,kap)}, v{BH+u} offset:{kap*1024}"
    def cs_read(rnd): return [("lg",f"ds_read_b128 v[{CS+4*(rnd&1)}:{CS+4*(rnd&1)+3}], v{CSA} offset:{rnd*256}",("CS",rnd))]
    def silu(a,rnd):
        if 'nosilu' in X: return []
        c=CS+4*(rnd&1); f=[("lgwait",("CS",rnd))]
        for h in range(2):
            us=(2*h,2*h+1); R8=[(u,i) for u in us for i in range(4)]
            t=lambda u,i: TMP+8*h+4*(u&1)+i
            if 'pk' not in X.split('_'):
                f+=[f"v_fmac_f32 v{a+4*u+i}, v{c+i}, v{NM+u}" for u,i in R8]
                f+=[f"v_mul_f32 v{t(u,i)}, v{a+4*u+i}, v{C1+u}" for u,i in R8]
                f+=[f"v_exp_f32 v{t(u,i)}, v{t(u,i)}" for u,i in R8]
                f+=[f"v_add_f32 v{t(u,i)}, 1.0, v{t(u,i)}" for u,i in R8]
                f+=[f"v_rcp_f32 v{t(u,i)}, v{t(u,i)}" for u,i in R8]
                f+=[f"v_mul_f32 v{a+4*u+i}, v{a+4*u+i}, v{t(u,i)}" for u,i in R8]
            else:
                R4=[(u,i) for u in us for i in (0,2)]
                def bc(base,u):
                    r=base+u
                    return (f"v[{r}:{r+1}]",0) if r%2==0 else (f"v[{r-1}:{r}]",1)
                for u,i in R4:
                    p,sel=bc(NM,u)
                    f.append(f"v_pk_fma_f32 v[{a+4*u+i}:{a+4*u+i+1}], v[{c+i}:{c+i+1}], {p}, v[{a+4*u+i}:{a+4*u+i+1}] op_sel:[0,{sel},0] op_sel_hi:[1,{sel},1]")
                for u,i in R4:
                    p,sel=bc(C1,u)
                    f.append(f"v_pk_mul_f32 v[{t(u,i)}:{t(u,i)+1}], v[{a+4*u+i}:{a+4*u+i+1}], {p} op_sel:[0,{sel}] op_sel_hi:[1,{sel}]")
                f+=[f"v_exp_f32 v{t(u,i)}, v{t(u,i)}" for u,i in R8]
                f+=[f"v_pk_add_f32 v[{t(u,i)}:{t(u,i)+1}], v[{t(u,i)}:{t(u,i)+1}], v[{ONE}:{ONE+1}]" for u,i in R4]
                f+=[f"v_rcp_f32 v{t(u,i)}, v{t(u,i)}" for u,i in R8]
                f+=[f"v_pk_mul_f32 v[{a+4*u+i}:{a+4*u+i+1}], v[{a+4*u+i}:{a+4*u+i+1}], v[{t(u,i)}:{t(u,i)+1}]" for u,i in R4]
            for u in us:
                f+=[f"v_cvt_pk_bf16_f32 v{PK+2*u}, v{a+4*u}, v{a+4*u+1}",f"v_cvt_pk_bf16_f32 v{PK+2*u+1}, v{a+4*u+2}, v{a+4*u+3}"]
            for u in us:
                f.append(("lg",f"ds_write_b64 v{HW+u}, v[{PK+2*u}:{PK+2*u+1}] offset:{rnd*2048}","HW"))
        return f
    md='' if 'nosc1' in X else ' sc1'
    def pack(a,half):
        f=[]
        for u in range(4): f+=[f"v_mul_f32 v{a+4*u+i}, v{a+4*u+i}, v{RS+u}" for i in range(4)]
        for u in range(4): f+=[f"v_cvt_pk_bf16_f32 v{PK+4*u+2*half}, v{a+4*u}, v{a+4*u+1}",f"v_cvt_pk_bf16_f32 v{PK+4*u+2*half+1}, v{a+4*u+2}, v{a+4*u+3}"]
        return f
    def store_pair(m):
        f=[]
        for u in range(4):
            f+=[f"s_add_u32 s31, s28, {u*T16+m*4096}"]
            if 'nost' not in X: f+=[("vm",f"buffer_store_dwordx4 v[{PK+4*u}:{PK+4*u+3}], v1, {LS}, s31 offen{md}",None)]
        return f+["s_nop 0"]
    def store_single():
        f=[]
        for u in range(4):
            f+=[f"s_add_u32 s31, s30, {u*T16}"]
            if 'nost' not in X: f+=[("vm",f"buffer_store_dwordx2 v[{PK+4*u}:{PK+4*u+1}], v1, {LS}, s31 offen",None)]
        return f
    kap=list(range(18)); LA=2; FS=6; BUD=int(os.environ.get('BUD45','8'))
    acc=lambda a:(a,a+4,a+8,a+12)
    A2=[AX,AY]
    post={}
    at={6-LA:[("vmwait",("X",11)),"s_barrier"],12-LA:[("vmwait","CSD"),"s_barrier"]}
    if 't0' in X:
        at={3:[("call",lambda:k.stamp(5))],4:[("vmwait",("X",11)),"s_barrier",("call",lambda:k.stamp(6))],10:[("call",lambda:k.stamp(7)),("vmwait","CSD"),"s_barrier",("call",lambda:k.stamp(8))],16:[("call",lambda:k.stamp(9))]}
    st.tile(acc(AX),kap,us=(0,1,2,3),bjit=bjX,la=LA,boost=1,hold=int(os.environ.get('HOLD','6')),burst=int(os.environ.get('BURST','8')),post=post,at=at,fillers=sf+cs_read(0),fill_start=int(os.environ.get('FS0','44')),budget=BUD); k.stamp(4)
    for r in range(1,9):
        f=cs_read(r)+silu(A2[(r-1)&1],r-1)
        if r==8:
            f+=[("lgwait","HW"),"s_barrier"]
            for s in range(LA):
                for u in range(4): f.append(("lg",bjH(u,s),("B",u,s)))
        st.tile(acc(A2[r&1]),kap,us=(0,1,2,3),fillers=f,fill_start=FS,budget=BUD)
        if r in (1,4,8) and not ('lat' in X and r!=8) and 'probe' not in X and 't0' not in X: k.stamp({1:5,4:6,8:7}[r])
    f=silu(A2[0],8)+[("lgwait","HW"),"s_barrier"]
    st.tile(acc(AY),kap,us=(0,1,2,3),fillers=f,bjit=bjH,la=LA,bpre=LA,flush_at=16,fill_start=FS,budget=BUD); k.stamp(8) if ('probe' not in X and 't0' not in X) else None
    if 'noext' not in X: st.add_quads([CS,CS+4,TMP,TMP+4,TMP+8,TMP+12,224,228,232,236])
    cur=[AX,AY]
    for t in range(1,9):
        prev=cur[t&1]; now=cur[(t+1)&1]
        tp=t-1
        f=pack(prev,tp&1)
        post={}
        if tp&1:
            if 'nospread' not in X:
                sp=store_pair(tp>>1)
                SP0=int(os.environ.get('SP0','7')); SPD=int(os.environ.get('SPD','3'))
                for u in range(4): post[SP0+SPD*u]=sp[2*u:2*u+2]
            else: f+=store_pair(tp>>1)
        if 'lat' in X and t==4: f+=[("call",lambda:k.stamp(5)),("call",lambda:k.vm_wait_all()),("call",lambda:k.stamp(6))]
        if t==6: f+=[("call",lambda: k.code_prefetch("k1_qkv0_kernel","k2_attn_codeend",4,240)),("call",lambda: k.code_prefetch("k6_red0_kernel","k6_red_codeend",4,246))]
        st.tile(acc(now),kap,us=(0,1,2,3),fillers=f,fill_start=FS,budget=BUD,boost=1,post=post,flushpost=True)
        if t==4 and 't0' not in X: k.stamp(9)
    k.e("s_nop 6")
    last=cur[(8+1)&1]
    for it in pack(last,0)+store_single(): st.place(it)
    k.stamp(10); k.stamp_dump()
    k.label(END); k.e("s_endpgm")
    return k,256,256,163840
```
